```python
import torch

def _softmax(x, axis=-1):
    return torch.softmax(x, dim=axis)

def _gelu(x):
    return torch.nn.functional.gelu(x, approximate='tanh')

def _silu(x):
    return torch.nn.functional.silu(x)

def _sigmoid(x):
    return torch.sigmoid(x)

def _layernorm(x, axis=-1, eps=1e-05):
    m = x.mean(dim=axis, keepdim=True)
    v = x.var(dim=axis, keepdim=True, unbiased=False)
    return (x - m) / torch.sqrt(v + eps)

def _scatter_add(tgt, idx, src, axis=0):
    return tgt.clone().index_add_(axis, idx, src)

def _segment_sum(src, seg, n):
    out = torch.zeros((n,) + src.shape[1:], dtype=src.dtype)
    return out.index_add_(0, seg, src)

def _pad(x, pw):
    flat = tuple((v for pair in reversed(pw) for v in pair))
    return torch.nn.functional.pad(x, flat)
kernel_name = 'sequential_preLN__grouped_kv_mqa__mixer_gmlp__prompt'

def setup_inputs():

    _w = lambda a: (lambda t: t.to(torch.bfloat16) if t.is_floating_point() else t)(torch.as_tensor(a))

    def _A_setup():
        B, S, D, H = (1, 2048, 512, 32)
        Dh = D // H
        return {'x': _w((lambda *s: torch.randn(*s, dtype=torch.bfloat16) * 0.05)(B, S, D)), 'wq': _w((lambda *s: torch.randn(*s, dtype=torch.bfloat16) * 0.05)(D, H * Dh)), 'wk': _w((lambda *s: torch.randn(*s, dtype=torch.bfloat16) * 0.05)(D, Dh)), 'wv': _w((lambda *s: torch.randn(*s, dtype=torch.bfloat16) * 0.05)(D, Dh)), 'wo': _w((lambda *s: torch.randn(*s, dtype=torch.bfloat16) * 0.05)(H * Dh, D))}
    _A_in = _A_setup()

    def _B_setup():
        B, S, D, F = (1, 2048, 512, 1792)
        Fh = F // 2
        return {'x': _w((lambda *s: torch.randn(*s, dtype=torch.bfloat16) * 0.05)(B, S, D)), 'w_in': _w((lambda *s: torch.randn(*s, dtype=torch.bfloat16) * 0.8)(D, 2 * Fh)), 'w_sp': _w(0.01 * (lambda *s: torch.randn(*s, dtype=torch.bfloat16) * 0.8)(S, S)), 'b_sp': _w(1.0 + 0.01 * (lambda *s: torch.randn(*s, dtype=torch.bfloat16) * 0.05)(S)), 'w_out': _w((lambda *s: torch.randn(*s, dtype=torch.bfloat16) * 0.05)(Fh, D))}
    _B_in = _B_setup()
    return {'A_x': _A_in['x'], 'A_wq': _A_in['wq'], 'A_wk': _A_in['wk'], 'A_wv': _A_in['wv'], 'A_wo': _A_in['wo'], 'B_x': _B_in['x'], 'B_w_in': _B_in['w_in'], 'B_w_sp': _B_in['w_sp'], 'B_b_sp': _B_in['b_sp'], 'B_w_out': _B_in['w_out']}

def reference(A_x, A_wq, A_wk, A_wv, A_wo, B_x, B_w_in, B_w_sp, B_b_sp, B_w_out):

    def _A_ref(x, wq, wk, wv, wo):
        B, S, D = x.shape
        H = 32
        Dh = D // H
        q = (lambda x, *d: x.permute(*d))((x @ wq).reshape(B, S, H, Dh), 0, 2, 1, 3)
        k = x @ wk
        v = x @ wv
        scores = torch.einsum('bhqd,bkd->bhqk', q, k) * Dh ** (-0.5)
        p = _softmax(scores, axis=-1)
        o = torch.einsum('bhqk,bkd->bhqd', p, v)
        return (lambda x, *d: x.permute(*d))(o, 0, 2, 1, 3).reshape(B, S, H * Dh) @ wo

    def _B_ref(x, w_in, w_sp, b_sp, w_out):
        B, S, D = x.shape
        F = w_in.shape[-1]
        Fh = F // 2
        z = _gelu(torch.einsum('bsd,df->bsf', x, w_in))
        z1 = z[..., :Fh].clone()
        z2 = _layernorm(z[..., Fh:], axis=-1)
        g = torch.einsum('ts,bsf->btf', w_sp, z2) + b_sp[None, :, None]
        return torch.einsum('bsf,fd->bsd', z1 * g, w_out)
    x = A_x
    h = x + _A_ref(_layernorm(x, axis=-1), A_wq, A_wk, A_wv, A_wo)
    h2 = h + _B_ref(_layernorm(h, axis=-1), B_w_in, B_w_sp, B_b_sp, B_w_out)
    return h2
```

```python
import re, sys

def v(i, n=1):
    return f"v{i}" if n == 1 else f"v[{i}:{i+n-1}]"
def a(i, n=1):
    return f"a{i}" if n == 1 else f"a[{i}:{i+n-1}]"
def s(i, n=1):
    return f"s{i}" if n == 1 else f"s[{i}:{i+n-1}]"

class Asm:
    def __init__(self):
        self.lines = []
        self._uid = 0
    def __call__(self, text):
        for ln in text.split("\n"):
            ln = ln.strip()
            if ln:
                self.lines.append("    " + ln if not ln.endswith(":") else ln)
    def label(self, name):
        self.lines.append(name + ":")
    def comment(self, t):
        self.lines.append("    ; " + t)
    def uid(self, p="L"):
        self._uid += 1
        return f"{p}_{self._uid}"
    def nop(self, n):
        while n > 0:
            k = min(n, 16)
            self(f"s_nop {k-1}")
            n -= k
    def text(self):
        return "\n".join(self.lines) + "\n"

class Regs:
    def __init__(self, lo, hi, name="v"):
        self.lo, self.hi, self.name = lo, hi, name
        self.used = {}
        self.maxused = lo - 1
    def alloc(self, n=1, align=1, tag=""):
        if n >= 2 and align < 2: align = 2
        i = self.lo
        while True:
            i = (i + align - 1) // align * align
            if i + n > self.hi:
                raise RuntimeError(f"out of {self.name} regs allocating {n} ({tag}); used={sorted(set(self.used.values()))}")
            if all((i + k) not in self.used for k in range(n)):
                for k in range(n): self.used[i + k] = tag
                self.maxused = max(self.maxused, i + n - 1)
                return i
            i += 1
    def free(self, base, n=1):
        for k in range(n):
            del self.used[base + k]
    def mark(self, base, n, tag):
        for k in range(n):
            assert base + k not in self.used, (base + k, self.used[base+k], tag)
            self.used[base + k] = tag
        self.maxused = max(self.maxused, base + n - 1)

TRANS = ("v_exp_f32", "v_log_f32", "v_rcp_f32", "v_rsq_f32", "v_sqrt_f32", "v_sin_f32", "v_cos_f32",
         "v_exp_f16", "v_log_f16", "v_rcp_f16", "v_rsq_f16", "v_sqrt_f16", "v_rcp_iflag_f32")

def split_ops(txt):
    ops, depth, cur = [], 0, ""
    for ch in txt:
        if ch in "[(": depth += 1
        if ch in "])": depth -= 1
        if ch == "," and depth == 0:
            ops.append(cur.strip()); cur = ""
        else:
            cur += ch
    if cur.strip(): ops.append(cur.strip())
    return ops

REG_RE = re.compile(r"^(-|\|)?(abs\()?([vas])(\d+|\[(\d+):(\d+)\])(\)|\|)?$")
def regs_of(tok):
    tok = tok.strip()
    if tok in ("vcc", "exec"): return [tok + "_lo", tok + "_hi"]
    if tok in ("vcc_lo", "vcc_hi", "exec_lo", "exec_hi", "m0", "scc"): return [tok]
    m = REG_RE.match(tok)
    if not m: return []
    k = m.group(3)
    if m.group(5) is not None:
        return [f"{k}{i}" for i in range(int(m.group(5)), int(m.group(6)) + 1)]
    return [f"{k}{m.group(4)}"]

class Ins:
    __slots__ = ("text", "mn", "ops", "mods", "dst", "src", "kind", "passes", "line", "srcC", "target", "nstates", "datasrc")
    def __init__(self, text, line):
        self.text = text; self.line = line
        t = text.split(";")[0].strip()
        parts = t.split(None, 1)
        self.mn = parts[0]
        rest = parts[1] if len(parts) > 1 else ""
        ops = split_ops(rest)
        mods = []
        if ops:
            last = ops[-1].split()
            ops[-1] = last[0]
            mods = last[1:]
        self.ops = ops; self.mods = mods
        self.dst = []; self.src = []; self.srcC = []; self.target = None; self.passes = 0; self.nstates = 1
        self.datasrc = []
        mn = self.mn
        for suf in ("_e32", "_e64", "_dpp", "_sdwa"):
            if mn.endswith(suf): mn = mn[:-len(suf)]
        self.mn = mn
        R = lambda i: regs_of(ops[i]) if i < len(ops) else []
        if mn.startswith("v_mfma") or mn.startswith("v_smfmac"):
            self.kind = "mfma"
            self.dst = R(0); self.src = R(1) + R(2) + R(3); self.srcC = R(3)
            if "32x32x16" in mn or "32x32x8" in mn or "32x32x32" in mn: self.passes = 8
            elif "16x16x32" in mn or "16x16x16" in mn or "16x16x64" in mn: self.passes = 4
            else: raise RuntimeError("unknown mfma " + text)
        elif mn.startswith("v_"):
            self.kind = "valu"
            if mn.startswith("v_cmp"):
                self.dst = R(0); self.src = R(1) + R(2)
                if mn.startswith("v_cmpx"): self.dst += ["exec_lo", "exec_hi"]
            elif mn in ("v_readfirstlane_b32", "v_readlane_b32"):
                self.dst = R(0); self.src = R(1) + R(2)
            elif mn.startswith("v_permlane") and "swap" in mn:
                self.dst = R(0) + R(1); self.src = R(0) + R(1)
            elif mn in ("v_add_co_u32", "v_sub_co_u32", "v_subrev_co_u32"):
                self.dst = R(0) + R(1); self.src = R(2) + R(3)
            elif mn in ("v_addc_co_u32", "v_subb_co_u32"):
                self.dst = R(0) + R(1); self.src = R(2) + R(3) + R(4)
            elif mn == "v_cndmask_b32":
                self.dst = R(0); self.src = R(1) + R(2) + (R(3) if len(ops) > 3 else ["vcc_lo", "vcc_hi"])
            elif mn in ("v_fmac_f32", "v_dot2c_f32_bf16", "v_writelane_b32", "v_pk_fmac_f16", "v_fmac_f16"):
                self.dst = R(0); self.src = R(0) + sum((R(i) for i in range(1, len(ops))), [])
            else:
                self.dst = R(0); self.src = sum((R(i) for i in range(1, len(ops))), [])
                if self.text.find("dpp") >= 0 or "row_" in text or "quad_perm" in text or "UNUSED_PRESERVE" in text or "wave_" in text:
                    self.src += R(0)
        elif mn.startswith("ds_"):
            self.kind = "ds"
            if mn.startswith("ds_read") or mn.startswith("ds_load"):
                self.dst = R(0); self.src = R(1)
            elif mn in ("ds_bpermute_b32", "ds_permute_b32"):
                self.dst = R(0); self.src = R(1) + R(2)
            elif mn == "ds_swizzle_b32":
                self.dst = R(0); self.src = R(1)
            elif "rtn" in mn:
                self.dst = R(0); self.src = sum((R(i) for i in range(1, len(ops))), [])
            else:
                self.src = sum((R(i) for i in range(len(ops))), [])
                self.datasrc = sum((R(i) for i in range(1, len(ops))), [])
        elif mn.startswith("buffer_") or mn.startswith("global_") or mn.startswith("flat_"):
            self.kind = "vmem"
            allm = " ".join(mods)
            if mn in ("buffer_inv", "buffer_wbl2"):
                pass
            elif mn.startswith("buffer_load"):
                if "lds" in mods:
                    self.src = sum((R(i) for i in range(len(ops))), []) + ["m0"]
                else:
                    self.dst = R(0); self.src = sum((R(i) for i in range(1, len(ops))), [])
            elif mn.startswith("buffer_store"):
                self.src = sum((R(i) for i in range(len(ops))), []); self.datasrc = R(0)
            elif mn.startswith("buffer_atomic"):
                self.src = sum((R(i) for i in range(len(ops))), []); self.datasrc = R(0)
                if "sc0" in mods: self.dst = R(0) if "cmpswap" not in mn else R(0)[:len(R(0))//2]
            elif mn.startswith("global_load_lds"):
                self.src = sum((R(i) for i in range(len(ops))), []) + ["m0"]
            elif mn.startswith("global_load"):
                self.dst = R(0); self.src = sum((R(i) for i in range(1, len(ops))), [])
            elif mn.startswith("global_store"):
                self.src = sum((R(i) for i in range(len(ops))), []); self.datasrc = R(1)
            elif mn.startswith("global_atomic"):
                if "sc0" in mods:
                    self.dst = R(0); self.src = sum((R(i) for i in range(1, len(ops))), []); self.datasrc = R(2)
                else:
                    self.src = sum((R(i) for i in range(len(ops))), []); self.datasrc = R(1)
            else:
                raise RuntimeError("unknown vmem " + text)
        elif mn.startswith("s_"):
            if mn == "s_nop":
                self.kind = "nop"; self.nstates = int(ops[0], 0) + 1
            elif mn == "s_waitcnt": self.kind = "waitcnt"
            elif mn in ("s_barrier", "s_sleep", "s_setprio", "s_endpgm", "s_sethalt"): self.kind = "misc"
            elif mn in ("s_branch",) or mn.startswith("s_cbranch"):
                self.kind = "branch"; self.target = ops[0]
                if "vcc" in mn: self.src = ["vcc_lo", "vcc_hi"]
                if "exec" in mn: self.src = ["exec_lo", "exec_hi"]
                if "scc" in mn: self.src = ["scc"]
            elif mn.startswith("s_load") or mn.startswith("s_buffer_load") or mn in ("s_memtime", "s_memrealtime"):
                self.kind = "smem"; self.dst = R(0); self.src = sum((R(i) for i in range(1, len(ops))), [])
            elif mn.startswith("s_cmp") or mn.startswith("s_bitcmp"):
                self.kind = "salu"; self.dst = ["scc"]; self.src = sum((R(i) for i in range(len(ops))), [])
            else:
                self.kind = "salu"; self.dst = R(0); self.src = sum((R(i) for i in range(1, len(ops))), [])
                if mn.startswith("s_cselect") or mn in ("s_addc_u32", "s_subb_u32"): self.src += ["scc"]
                if "saveexec" in mn: self.dst += ["exec_lo", "exec_hi"]; self.src += ["exec_lo", "exec_hi"]
                if mn in ("s_addk_i32", "s_mulk_i32"): self.src += R(0)
                if mn not in ("s_mov_b32", "s_mov_b64", "s_movk_i32", "s_cselect_b32", "s_cselect_b64", "s_getreg_b32", "s_setreg_b32", "s_mul_i32", "s_mul_hi_u32"):
                    self.dst = self.dst + ["scc"]
        else:
            raise RuntimeError("unknown instr " + text)

def parse_waitcnt(text):
    vm = lg = None
    m = re.search(r"vmcnt\((\d+)\)", text)
    if m: vm = int(m.group(1))
    m = re.search(r"lgkmcnt\((\d+)\)", text)
    if m: lg = int(m.group(1))
    return vm, lg

def check(text, name="", max_paths=256, verbose=False):
    insns = []; labels = {}
    for ln, raw in enumerate(text.split("\n")):
        t = raw.split(";")[0].strip()
        if not t or t.startswith("."): continue
        if t.endswith(":"):
            labels[t[:-1]] = len(insns); continue
        insns.append(Ins(t, ln + 1))
    problems = {}
    for I in insns:
        m = re.search(r"offset:(-?\d+)", I.text)
        if m:
            o = int(m.group(1))
            if I.mn.startswith("buffer_") and not (0 <= o <= 4095): problems[(I.line, "off")] = f"{name}:{I.line}: MUBUF offset out of range: {I.text}"
            if I.mn.startswith("global_") and not (-4096 <= o <= 4095): problems[(I.line, "off")] = f"{name}:{I.line}: global offset out of range: {I.text}"
            if I.mn.startswith("ds_") and not (0 <= o <= 65535): problems[(I.line, "off")] = f"{name}:{I.line}: ds offset out of range: {I.text}"
    def report(i, msg):
        key = (i.line, msg)
        if key not in problems: problems[key] = f"{name}:{i.line}: {msg}: {i.text}"
    npaths = [0]
    sys.setrecursionlimit(10000)
    stack = [(0, 0, {}, [], [], frozenset())]
    while stack:
        pc, pos, lastw, vmq, lgq, back = stack.pop()
        npaths[0] += 1
        if npaths[0] > max_paths:
            problems[("paths",)] = f"{name}: too many paths, truncated"
            break
        lastw = dict(lastw); vmq = list(vmq); lgq = list(lgq)
        while pc < len(insns):
            I = insns[pc]
            k = I.kind
            def dist(reg):
                e = lastw.get(reg)
                return None if e is None else (e, pos - e[1] - 1)
            if k not in ("waitcnt",):
                touched = set(I.src) | set(I.dst)
                for q, nm in ((vmq, "vmcnt"), (lgq, "lgkmcnt")):
                    for (dregs, J) in q:
                        hit = touched & dregs
                        if hit:
                            if not (set(I.src) & dregs) and ((k == "vmem" and nm == "vmcnt") or (k == "ds" and nm == "lgkmcnt")) and J.kind != "smem":
                                continue
                            report(I, f"uses {sorted(hit)[:3]} with pending {nm} load from line {J.line}")
            if k in ("valu", "mfma", "vmem", "ds", "salu", "smem"):
                for r in I.src:
                    d = dist(r)
                    if d is None: continue
                    (wk, wp, passes, W), n = d
                    need = 0
                    if wk == "valu":
                        isv = r[0] in "va" and r not in ("vcc_lo", "vcc_hi")
                        if isv:
                            if k == "mfma": need = 2
                            elif k == "valu":
                                if I.mn in ("v_readlane_b32", "v_readfirstlane_b32"): need = max(need, 1)
                                if I.mn.startswith("v_permlane"): need = max(need, 2)
                                if "row_" in I.text or "quad_perm" in I.text or "wave_" in I.text or "_dpp" in I.text: need = max(need, 2)
                                if W.mn in TRANS and I.mn not in TRANS: need = max(need, 1)
                                if ("sdwa" in W.text or "op_sel" in W.text) and "pk_" not in W.mn: need = max(need, 1)
                            elif k in ("vmem", "ds") and W.mn in TRANS: need = max(need, 1)
                            if W.mn.startswith("v_dot"):
                                samec = (I.mn == W.mn) and (r not in regs_of(I.ops[1]) + regs_of(I.ops[2]))
                                if not samec: need = max(need, 3)
                        else:
                            if k in ("valu", "mfma"):
                                need = 2
                                if I.mn in ("v_readlane_b32", "v_writelane_b32") : need = 4
                                if I.mn == "v_div_fmas_f32": need = 4
                            elif k == "vmem": need = 5
                            elif k in ("salu", "smem"): need = 0
                            if r.startswith("exec") and k == "mfma": need = 4
                    elif wk == "mfma":
                        tbl_ab = {4: 8, 8: 12}; tbl_c = {4: 6, 8: 10}
                        if k == "mfma":
                            if r in I.srcC and not (r in (set(I.src) - set(I.srcC)) and False): pass
                            inAB = r in regs_of(I.ops[1]) or r in regs_of(I.ops[2])
                            if inAB: need = tbl_ab[passes]
                            else:
                                if I.srcC == W.dst and I.passes == passes: need = 0
                                else: need = tbl_c[passes]
                        else:
                            need = tbl_ab[passes]
                    elif wk == "salu":
                        if r == "m0" and k in ("vmem", "ds"): need = 1
                    if n < need:
                        report(I, f"hazard {wk}({W.mn} line {W.line})->{k} on {r}: {n} < {need} wait states")
                for r in I.dst:
                    d = dist(r)
                    if d is not None:
                        (wk, wp, passes, W), n = d
                        if wk == "mfma" and k in ("valu", "vmem", "ds"):
                            need = {4: 8, 8: 12}[passes]
                            if n < need: report(I, f"hazard WAW mfma(line {W.line})->{k} on {r}: {n} < {need}")
                        if wk == "mfma" and k == "mfma" and not (I.srcC == W.dst and I.passes == passes and I.dst == W.dst):
                            need = {4: 6, 8: 10}[passes]
                            if n < need: report(I, f"hazard WAW mfma(line {W.line})->mfma on {r}: {n} < {need}")
                    if k == "valu":
                        d = dist("C:" + r)
                        if d is not None:
                            (wk, wp, passes, W), n = d
                            need = {4: 3, 8: 7}[passes]
                            if n < need: report(I, f"hazard WAR mfma srcC(line {W.line})->valu write {r}: {n} < {need}")
                        d = dist("SD:" + r)
                        if d is not None:
                            (wk, wp, passes, W), n = d
                            if n < 2: report(I, f"hazard wide store data WAR (line {W.line}) {r}: {n} < 2")
                    if k in ("ds", "vmem"):
                        d = dist("SD:" + r)
                        if d is not None and d[1] < 1: report(I, f"hazard wide store data WAR(1) {r}")
            if k == "waitcnt":
                vm, lg = parse_waitcnt(I.text)
                if vm is not None:
                    while len(vmq) > vm: vmq.pop(0)
                if lg is not None:
                    if lg > 0 and any(J.kind == "smem" for _, J in lgq): report(I, "counted lgkmcnt with SMEM outstanding")
                    while len(lgq) > lg: lgq.pop(0)
            elif k == "vmem":
                vmq.append((frozenset(I.dst), I))
                if len(vmq) > 63: report(I, "more than 63 outstanding vmcnt")
                if I.datasrc and len(I.datasrc) >= 3:
                    for r in I.datasrc: lastw["SD:" + r] = ("store", pos, 0, I)
            elif k in ("ds", "smem"):
                lgq.append((frozenset(I.dst), I))
                if k == "smem" and len(I.dst) > 1: lgq.append((frozenset(), I))
                if len(lgq) > 15 and False: report(I, "more than 15 outstanding lgkmcnt")
            for r in I.dst:
                if k in ("valu", "mfma", "salu"):
                    lastw[r] = (k, pos, I.passes, I)
                else:
                    lastw.pop(r, None)
            if k == "mfma":
                for r in I.srcC: lastw["C:" + r] = ("mfmaC", pos, I.passes, I)
            pos += I.nstates
            if I.mn == "s_endpgm": break
            if k == "branch":
                tgt = labels.get(I.target)
                if tgt is None:
                    report(I, "unknown label"); break
                if I.mn == "s_branch":
                    if tgt <= pc:
                        if pc in back: break
                        back = back | {pc}
                    pc = tgt; continue
                if tgt <= pc:
                    if pc not in back:
                        stack.append((pc + 1, pos, dict(lastw), list(vmq), list(lgq), back))
                        back = back | {pc}; pc = tgt; continue
                else:
                    stack.append((tgt, pos, dict(lastw), list(vmq), list(lgq), back))
            pc += 1
    return list(problems.values())
```

```python
import numpy as np
S, D, H, DH, F, FH = 2048, 512, 32, 16, 1792, 896
WS_KF   = 0x000000
WS_VF   = 0x010000
WS_KMAX = 0x020000
WS_FLAG = 0x021000
WS_QF   = 0x100000
WS_OF   = 0x300000
WS_HF   = 0x500000
WS_HST  = 0x700000
WS_Z1   = 0x800000
WS_Z2   = 0xC00000
WS_Z2ST = 0x1000000
WS_Y    = 0x1100000
WS_WOF  = 0x1500000
WS_WINF = 0x1600000
WS_WOUTF= 0x1900000
WS_STAMP= 0x1E00000
WS_END  = 0x2000000

def bf16_to_f32(u16):
    return (u16.astype(np.uint32) << 16).view(np.float32)

lane = np.arange(64); g16 = lane >> 4; m16 = lane & 15; jj = np.arange(8)

def dec_KF(ws):
    a = bf16_to_f32(ws[WS_KF:WS_KF + 65536].view(np.uint16)).reshape(64, 64, 8)
    K = np.zeros((S, 16), np.float32)
    for l in range(64):
        K[(np.arange(64) * 32 + (l & 31))[:, None], (8 * (l >> 5) + jj)[None, :]] = a[:, l, :]
    return K
def dec_VF(ws):
    a = bf16_to_f32(ws[WS_VF:WS_VF + 65536].view(np.uint16)).reshape(64, 2, 2, 16, 8)
    V = np.zeros((S, 16), np.float32)
    for aa in range(2):
        for h in range(2):
            for j in range(8):
                key = 16 * aa + (j & 3) + 8 * (j >> 2) + 4 * h
                V[np.arange(64) * 32 + key, :] = a[:, aa, h, :, j]
    return V
def dec_QF(ws):
    a = bf16_to_f32(ws[WS_QF:WS_QF + 2 * 1024 * 1024].view(np.uint16)).reshape(32, 8, 8, 64, 8)
    Q = np.zeros((S, D), np.float32)
    for hg in range(8):
        for w in range(8):
            tt, hp = w >> 1, w & 1
            for l in range(64):
                head = hg * 4 + hp * 2 + ((l >> 4) & 1)
                tok = np.arange(32) * 64 + tt * 16 + (l & 15)
                Q[tok[:, None], (head * 16 + 8 * (l >> 5) + jj)[None, :]] = a[:, hg, w, l, :]
    return Q
def dec_OF(ws):
    a = bf16_to_f32(ws[WS_OF:WS_OF + 2 * 1024 * 1024].view(np.uint16)).reshape(32, 4, 16, 64, 8)
    O = np.zeros((S, D), np.float32)
    for tt in range(4):
        for ks in range(16):
            for l in range(64):
                g = l >> 4
                i = ks * 32 + (g & 1) * 16 + (jj & 3) + 8 * (jj >> 2) + 4 * (g >> 1)
                tok = np.arange(32) * 64 + tt * 16 + (l & 15)
                O[tok[:, None], i[None, :]] = a[:, tt, ks, l, :]
    return O
def dec_HF(ws):
    a = bf16_to_f32(ws[WS_HF:WS_HF + 2 * 1024 * 1024].view(np.uint16)).reshape(32, 4, 16, 64, 8)
    Hh = np.zeros((S, D), np.float32)
    for tt in range(4):
        for ks in range(16):
            for l in range(64):
                tok = np.arange(32) * 64 + tt * 16 + (l & 15)
                Hh[tok[:, None], (ks * 32 + 8 * (l >> 4) + jj)[None, :]] = a[:, tt, ks, l, :]
    return Hh
def dec_WOF(ws):
    a = bf16_to_f32(ws[WS_WOF:WS_WOF + 512 * 1024].view(np.uint16)).reshape(32, 16, 64, 8)
    W = np.zeros((512, 512), np.float32)
    for jt in range(32):
        for l in range(64):
            g, m = l >> 4, l & 15
            j = (jt >> 1) * 32 + 8 * (m >> 2) + 4 * (jt & 1) + (m & 3)
            for ks in range(16):
                i = ks * 32 + (g & 1) * 16 + (jj & 3) + 8 * (jj >> 2) + 4 * (g >> 1)
                W[i, j] = a[jt, ks, l, :]
    return W
def dec_WINF(ws):
    a = bf16_to_f32(ws[WS_WINF:WS_WINF + 112 * 16 * 1024].view(np.uint16)).reshape(112, 16, 64, 8)
    W = np.zeros((512, 1792), np.float32)
    for nt in range(112):
        for l in range(64):
            g, m = l >> 4, l & 15
            for ks in range(16):
                W[ks * 32 + 8 * g + jj, nt * 16 + m] = a[nt, ks, l, :]
    return W
def dec_WOUTF(ws):
    a = bf16_to_f32(ws[WS_WOUTF:WS_WOUTF + 32 * 28 * 1024].view(np.uint16)).reshape(32, 28, 64, 8)
    W = np.zeros((896, 512), np.float32)
    for jt in range(32):
        for l in range(64):
            g, m = l >> 4, l & 15
            j = (jt >> 1) * 32 + 8 * (m >> 2) + 4 * (jt & 1) + (m & 3)
            for ks in range(28):
                f = ks * 32 + (jj >> 2) * 16 + 4 * g + (jj & 3)
                W[f, j] = a[jt, ks, l, :]
    return W
def dec_ctile(ws, off, nft):
    n = 32 * 4 * nft * 256
    a = bf16_to_f32(ws[off:off + n * 2].view(np.uint16)).reshape(32, 4, nft, 64, 4)
    Z = np.zeros((S, nft * 16), np.float32)
    for tt in range(4):
        for l in range(64):
            g, t = l >> 4, l & 15
            tok = np.arange(32) * 64 + tt * 16 + t
            for ft in range(nft):
                Z[tok[:, None], (ft * 16 + 4 * g + np.arange(4))[None, :]] = a[:, tt, ft, l, :]
    return Z
def dec_Z1(ws): return dec_ctile(ws, WS_Z1, 56)
def dec_Y(ws): return dec_ctile(ws, WS_Y, 56)
def dec_Z2(ws):
    a = bf16_to_f32(ws[WS_Z2:WS_Z2 + 8 * 64 * 7 * 1024].view(np.uint16)).reshape(8, 64, 7, 64, 8)
    Z = np.zeros((S, FH), np.float32)
    for fb in range(8):
        for ft in range(7):
            for l in range(64):
                g, m = l >> 4, l & 15
                sidx = np.arange(64)[:, None] * 32 + 8 * g + jj[None, :]
                Z[sidx, fb * 112 + ft * 16 + m] = a[fb, :, ft, l, :]
    return Z
```

```python
import sys, math
from asmlib import *
from layout import *

NAME = "sequential_preLN__grouped_kv_mqa__mixer_gmlp__prompt"
QSCALE = 0.25 * math.log2(math.e)
def f2u(x):
    import struct
    return struct.unpack("<I", struct.pack("<f", x))[0]
def hexf(x): return f"0x{f2u(x):08x}"
ONES = "0x3f803f80"
import os
STAMPS = bool(int(os.environ.get('STAMPS', '0')))

KA = dict(x=0, wq=8, wk=16, wv=24, wo=32, bx=40, win=48, wsp=56, bsp=64, wout=72, out=80, dbg=88, ws=96)

class K:
    def __init__(self, name, nwg, threads=512, lds=163840):
        self.name, self.nwg, self.threads, self.lds = name, nwg, threads, lds
        self.a = Asm()
        self.V = Regs(1, 256, "v")
        self.S = Regs(3, 100, "s")
    def srd(self, ptr, nbytes, tag):
        a = self.a
        b = self.S.alloc(4, 4, tag)
        a(f"s_mov_b32 {s(b)}, {s(ptr)}")
        a(f"s_and_b32 {s(b+1)}, {s(ptr+1)}, 0xffff")
        a(f"s_mov_b32 {s(b+2)}, {nbytes}")
        a(f"s_mov_b32 {s(b+3)}, 0x20000")
        return b
    def prologue(self, ptrs):
        a = self.a
        a(f"s_cmp_ge_u32 s2, {self.nwg}")
        a(f"s_cbranch_scc1 {self.name}_end")
        r = {}
        for p in ptrs:
            b = self.S.alloc(2, 2, "ptr_" + p)
            a(f"s_load_dwordx2 {s(b,2)}, s[0:1], {KA[p]}")
            r[p] = b
        self.sw = self.S.alloc(1, 1, "wave")
        self.vl = self.V.alloc(1, 1, "lane")
        t = self.V.alloc(1)
        a(f"v_lshrrev_b32 {v(t)}, 6, v0")
        a(f"v_and_b32 {v(self.vl)}, 63, v0")
        a(f"v_readfirstlane_b32 {s(self.sw)}, {v(t)}")
        self.V.free(t)
        a("s_waitcnt lgkmcnt(0)")
        return r
    def dma(self, voff, srd, soff, ldsaddr_sreg_or_imm, flags=""):
        a = self.a
        if isinstance(ldsaddr_sreg_or_imm, int):
            a(f"s_mov_b32 m0, {ldsaddr_sreg_or_imm}")
        else:
            a(f"s_mov_b32 m0, {ldsaddr_sreg_or_imm}")
        a("s_nop 0")
        a(f"buffer_load_dwordx4 {v(voff)}, {s(srd,4)}, {soff} offen {flags} lds".replace("  ", " "))
    def init_stamps(self, n=16):
        if not STAMPS: return
        self.stamps = []
        self.stmp = self.S.alloc(2, 2, "stamp_tmp")
        self.stamp_regs = [self.S.alloc(1, 1, "stamp") for _ in range(n)]
        for r in self.stamp_regs: self.a(f"s_mov_b32 {s(r)}, 0")
        self.nstamp = 0
    def stamp(self, rt=False):
        if not STAMPS: return
        a = self.a
        if not hasattr(self, "stamps"): self.init_stamps(12)
        r = self.stamp_regs[self.nstamp]; self.nstamp += 1
        a(f"{'s_memrealtime' if rt else 's_memtime'} {s(self.stmp,2)}")
        a("s_waitcnt lgkmcnt(0)")
        a(f"s_mov_b32 {s(r)}, {s(self.stmp)}")
        self.stamps.append(r)
    def stamp_rt(self): self.stamp(True)
    def dump_stamps(self, sws_ptr, slot):
        if not STAMPS or not hasattr(self, "stamps"): return
        a = self.a
        assert len(self.stamps) <= 16
        b = self.S.alloc(4, 4, "srd_stamp")
        a(f"s_mov_b32 {s(b)}, {s(sws_ptr)}")
        a(f"s_and_b32 {s(b+1)}, {s(sws_ptr+1)}, 0xffff")
        a(f"s_mov_b32 {s(b+2)}, {WS_END}")
        a(f"s_mov_b32 {s(b+3)}, 0x20000")
        for i, r in enumerate(self.stamps): a(f"v_mov_b32 {v(4+i)}, {s(r)}")
        for i in range(len(self.stamps), 16): a(f"v_mov_b32 {v(4+i)}, 0")
        a(f"s_lshl_b32 {s(self.stmp)}, s2, 3")
        a(f"s_add_u32 {s(self.stmp)}, {s(self.stmp)}, {s(self.sw)}")
        a(f"s_lshl_b32 {s(self.stmp)}, {s(self.stmp)}, 6")
        a(f"s_add_u32 {s(self.stmp)}, {s(self.stmp)}, {WS_STAMP + slot*256*8*64}")
        a("v_mov_b32 v2, 0")
        a("s_mov_b64 exec, 1")
        for i in range(4):
            a(f"buffer_store_dwordx4 {v(4+4*i,4)}, v2, {s(b,4)}, {s(self.stmp)} offen offset:{16*i}")
        a("s_mov_b64 exec, -1")
    def finish(self):
        a = self.a
        a.label(f"{self.name}_end")
        a("s_endpgm")
    def text(self):
        hdr = f".globl {self.name}\n.p2align 8\n.type {self.name},@function\n{self.name}:\n"
        return hdr + self.a.text()
    def desc(self):
        nv = self.V.maxused + 1
        nv = max(nv, 8)
        acc = (nv + 3) // 4 * 4
        ns = min(102, self.S.maxused + 1 + 0)
        return f""".amdhsa_kernel {self.name}
  .amdhsa_next_free_vgpr {acc}
  .amdhsa_next_free_sgpr {max(ns, 16)}
  .amdhsa_accum_offset {acc}
  .amdhsa_group_segment_fixed_size 0
  .amdhsa_kernarg_size 104
  .amdhsa_user_sgpr_count 2
  .amdhsa_user_sgpr_kernarg_segment_ptr 1
  .amdhsa_system_sgpr_workgroup_id_x 1
  .amdhsa_float_denorm_mode_32 3
.end_amdhsa_kernel
"""

def reduce_g(k, r, tmp, op="v_add_f32"):
    a = k.a
    a(f"v_mov_b32 {v(tmp)}, {v(r)}")
    a.nop(2)
    a(f"v_permlane16_swap_b32 {v(r)}, {v(tmp)}")
    a(f"{op} {v(r)}, {v(r)}, {v(tmp)}")
    a(f"v_mov_b32 {v(tmp)}, {v(r)}")
    a.nop(2)
    a(f"v_permlane32_swap_b32 {v(r)}, {v(tmp)}")
    a(f"{op} {v(r)}, {v(r)}, {v(tmp)}")

def wg_rb_hg(k, srb, shg):
    a = k.a
    t = k.S.alloc(1)
    a(f"s_and_b32 {s(srb)}, s2, 7")
    a(f"s_lshl_b32 {s(srb)}, {s(srb)}, 2")
    a(f"s_lshr_b32 {s(t)}, s2, 3")
    a(f"s_and_b32 {s(t)}, {s(t)}, 3")
    a(f"s_add_u32 {s(srb)}, {s(srb)}, {s(t)}")
    a(f"s_lshr_b32 {s(shg)}, s2, 5")
    k.S.free(t)

def gen_K1():
    k = K("p1_kernel", 256)
    a = k.a; V = k.V; S = k.S
    P = k.prologue(["x", "wq", "wk", "wv", "wo", "win", "wout", "ws"])
    k.stamp_rt(); k.stamp()
    sw, vl = k.sw, k.vl
    srb = S.alloc(1, 1, "rb"); shg = S.alloc(1, 1, "hg")
    wg_rb_hg(k, srb, shg)
    sx = k.srd(P["x"], S_ * D * 2, "srd_x")
    swq = k.srd(P["wq"], D * D * 2, "srd_wq")
    sws = k.srd(P["ws"], WS_END, "srd_ws")
    skvp = S.alloc(2, 2, "kvptr")
    a(f"s_bitcmp1_b32 {s(shg)}, 0")
    a(f"s_cselect_b32 {s(skvp)}, {s(P['wv'])}, {s(P['wk'])}")
    a(f"s_cselect_b32 {s(skvp+1)}, {s(P['wv']+1)}, {s(P['wk']+1)}")
    skv = k.srd(skvp, D * 16 * 2, "srd_kv")
    LX, LWQ, LKV, LPREP = 0, 65536, 131072, 147456
    st0 = S.alloc(1, 1, "t0"); st1 = S.alloc(1, 1, "t1"); st2 = S.alloc(1, 1, "t2")
    vxo = V.alloc(1, 1, "xoff"); t0 = V.alloc(1); t1 = V.alloc(1); t2 = V.alloc(1)
    a(f"v_lshrrev_b32 {v(t0)}, 4, {v(vl)}")
    a(f"v_sub_u32 {v(t0)}, 0, {v(t0)}")
    a(f"v_xor_b32 {v(t0)}, {v(t0)}, {v(vl)}")
    a(f"v_and_b32 {v(t0)}, 3, {v(t0)}")
    a(f"v_lshlrev_b32 {v(t0)}, 4, {v(t0)}")
    a(f"v_lshrrev_b32 {v(t1)}, 2, {v(vl)}")
    a(f"v_lshlrev_b32 {v(t1)}, 10, {v(t1)}")
    a(f"v_add_u32 {v(vxo)}, {v(t0)}, {v(t1)}")
    vwe = V.alloc(1, 1, "wq_even"); vwod = V.alloc(1, 1, "wq_odd")
    a(f"v_lshrrev_b32 {v(t0)}, 4, {v(vl)}")
    a(f"v_and_b32 {v(t0)}, 1, {v(t0)}")
    a(f"v_lshlrev_b32 {v(t0)}, 1, {v(t0)}")
    a(f"v_and_b32 {v(t1)}, 7, {v(vl)}")
    a(f"v_xor_b32 {v(t0)}, {v(t0)}, {v(t1)}")
    a(f"v_lshlrev_b32 {v(t0)}, 4, {v(t0)}")
    a(f"v_lshrrev_b32 {v(t1)}, 3, {v(vl)}")
    a(f"v_lshlrev_b32 {v(t1)}, 10, {v(t1)}")
    a(f"v_add_u32 {v(vwe)}, {v(t0)}, {v(t1)}")
    a(f"v_xor_b32 {v(vwod)}, 64, {v(vwe)}")
    vlin = V.alloc(1, 1, "lin16")
    a(f"v_lshlrev_b32 {v(vlin)}, 4, {v(vl)}")
    a(f"s_lshl_b32 {s(st0)}, {s(srb)}, 16")
    a(f"s_lshr_b32 {s(st1)}, {s(sw)}, 1")
    a(f"s_lshl_b32 {s(st1)}, {s(st1)}, 14")
    a(f"s_add_u32 {s(st0)}, {s(st0)}, {s(st1)}")
    a(f"s_and_b32 {s(st1)}, {s(sw)}, 1")
    a(f"s_lshl_b32 {s(st1)}, {s(st1)}, 9")
    a(f"s_add_u32 {s(st0)}, {s(st0)}, {s(st1)}")
    a(f"s_lshl_b32 {s(st1)}, {s(sw)}, 13")
    a(f"s_lshl_b32 {s(st2)}, {s(sw)}, 11")
    for i in range(2):
        a(f"s_add_u32 m0, {s(st2)}, {LKV + i*1024}")
        a(f"s_add_u32 s98, {s(st2)}, {i*1024}")
        a(f"buffer_load_dwordx4 {v(vlin)}, {s(skv,4)}, s98 offen lds")
    S.mark(98, 2, "tmp98")
    for i in range(8):
        a(f"s_add_u32 m0, {s(st1)}, {LX + i*1024}")
        a(f"s_add_u32 s98, {s(st0)}, {i*64}")
        a(f"buffer_load_dwordx4 {v(vxo)}, {s(sx,4)}, s98 offen lds")
    a(f"s_lshl_b32 {s(st0)}, {s(shg)}, 7")
    a(f"s_lshl_b32 {s(st2)}, {s(sw)}, 16")
    a(f"s_add_u32 {s(st0)}, {s(st0)}, {s(st2)}")
    for i in range(8):
        a(f"s_add_u32 m0, {s(st1)}, {LWQ + i*1024}")
        a(f"s_add_u32 s98, {s(st0)}, {i*8192}")
        a(f"buffer_load_dwordx4 {v(vwe if i%2==0 else vwod)}, {s(swq,4)}, s98 offen lds")
    zz = V.alloc(2, 2, "zz")
    a(f"v_mov_b32 {v(zz)}, 0"); a(f"v_mov_b32 {v(zz+1)}, 0")
    a(f"v_lshlrev_b32 {v(t0)}, 3, {v(vl)}")
    a(f"s_lshl_b32 {s(st0)}, s2, 9"); a(f"s_add_u32 {s(st0)}, {s(st0)}, {WS_Z2ST}")
    a(f"s_cmp_eq_u32 {s(sw)}, 0")
    a("s_cbranch_scc0 p1_nozero")
    a(f"buffer_store_dwordx2 {v(zz,2)}, {v(t0)}, {s(sws,4)}, {s(st0)} offen")
    a.label("p1_nozero")
    V.free(zz, 2)
    su = S.alloc(1, 1, "unit")
    a(f"s_lshl_b32 {s(su)}, {s(sw)}, 8")
    a(f"s_add_u32 {s(su)}, {s(su)}, s2")
    vxa = V.alloc(1, 1, "xaddr"); vq0 = V.alloc(1, 1, "wqaddr0"); vq1 = V.alloc(1, 1, "wqaddr1"); vka = V.alloc(1, 1, "kvaddr")
    a(f"v_lshrrev_b32 {v(t0)}, 2, {v(vl)}")
    a(f"v_and_b32 {v(t0)}, 3, {v(t0)}")
    a(f"v_sub_u32 {v(t0)}, 0, {v(t0)}")
    a(f"v_lshrrev_b32 {v(t1)}, 4, {v(vl)}")
    a(f"v_xor_b32 {v(t0)}, {v(t0)}, {v(t1)}")
    a(f"v_and_b32 {v(t0)}, 3, {v(t0)}")
    a(f"v_lshlrev_b32 {v(t0)}, 4, {v(t0)}")
    a(f"v_and_b32 {v(t1)}, 15, {v(vl)}")
    a(f"v_lshlrev_b32 {v(t1)}, 6, {v(t1)}")
    a(f"v_add_u32 {v(vxa)}, {v(t0)}, {v(t1)}")
    a(f"s_lshr_b32 {s(st0)}, {s(sw)}, 1")
    a(f"s_lshl_b32 {s(st0)}, {s(st0)}, 14")
    a(f"v_add_u32 {v(vxa)}, {s(st0)}, {v(vxa)}")
    a(f"v_lshrrev_b32 {v(t0)}, 4, {v(vl)}")
    a(f"v_lshrrev_b32 {v(t1)}, 2, {v(vl)}")
    a(f"v_and_b32 {v(t1)}, 3, {v(t1)}")
    a(f"v_lshl_add_u32 {v(t2)}, {v(t0)}, 3, {v(t1)}")
    a(f"v_lshlrev_b32 {v(vq0)}, 7, {v(t2)}")
    a(f"v_lshlrev_b32 {v(vka)}, 5, {v(t2)}")
    a(f"v_lshrrev_b32 {v(t1)}, 1, {v(t1)}")
    a(f"v_and_b32 {v(t0)}, 1, {v(t0)}")
    a(f"v_lshl_or_b32 {v(t0)}, {v(t0)}, 1, {v(t1)}")
    a(f"s_and_b32 {s(st0)}, {s(sw)}, 1")
    a(f"s_lshl_b32 {s(st0)}, {s(st0)}, 1")
    a(f"v_xor_b32 {v(t0)}, {s(st0)}, {v(t0)}")
    a(f"v_and_b32 {v(t1)}, 3, {v(vl)}")
    a(f"v_lshlrev_b32 {v(t1)}, 3, {v(t1)}")
    a(f"v_add_u32 {v(vq0)}, {v(vq0)}, {v(t1)}")
    a(f"v_add_u32 {v(vka)}, {v(vka)}, {v(t1)}")
    a(f"v_add_u32 {v(vka)}, {LKV}, {v(vka)}")
    a(f"v_add_u32 {v(vq0)}, {LWQ}, {v(vq0)}")
    a(f"v_xor_b32 {v(t1)}, 1, {v(t0)}")
    a(f"v_lshlrev_b32 {v(t0)}, 5, {v(t0)}")
    a(f"v_lshlrev_b32 {v(t1)}, 5, {v(t1)}")
    a(f"v_add_u32 {v(vq1)}, {v(vq0)}, {v(t1)}")
    a(f"v_add_u32 {v(vq0)}, {v(vq0)}, {v(t0)}")
    q0 = V.alloc(4, 4, "q0"); q1 = V.alloc(4, 4, "q1"); c0 = V.alloc(4, 4, "c0"); c1 = V.alloc(4, 4, "c1")
    kv = V.alloc(4, 4, "kv"); ck = V.alloc(4, 4, "ck"); ones = V.alloc(4, 4, "ones")
    s1 = V.alloc(1, 1, "s1"); s2 = V.alloc(1, 1, "s2")
    for r in (q0, q1, c0, c1, kv, ck):
        for i in range(4): a(f"v_mov_b32 {v(r+i)}, 0")
    for i in range(4): a(f"v_mov_b32 {v(ones+i)}, {ONES}")
    a(f"v_mov_b32 {v(s1)}, 0"); a(f"v_mov_b32 {v(s2)}, 0")
    NB = 2
    xb = [V.alloc(4, 4, "xb") for _ in range(NB)]
    a0 = [V.alloc(4, 4, "a0") for _ in range(NB)]
    a1 = [V.alloc(4, 4, "a1") for _ in range(NB)]
    ak = [V.alloc(4, 4, "ak") for _ in range(NB)]
    k.stamp()
    a("s_waitcnt vmcnt(0)")
    k.stamp()
    a("s_barrier")
    k.stamp()
    a(f"s_and_b32 {s(st0)}, {s(shg)}, 6")
    a(f"s_cmp_eq_u32 {s(st0)}, {s(sw)}")
    a("s_cbranch_scc1 p1_kvloop")
    def kloop(withkv):
        def issue(ks):
            b = ks % NB
            a(f"ds_read_b128 {v(xb[b],4)}, {v(vxa)} offset:{ks*1024}")
            a(f"ds_read_b64_tr_b16 {v(a0[b],2)}, {v(vq0)} offset:{ks*4096}")
            a(f"ds_read_b64_tr_b16 {v(a0[b]+2,2)}, {v(vq0)} offset:{ks*4096+512}")
            a(f"ds_read_b64_tr_b16 {v(a1[b],2)}, {v(vq1)} offset:{ks*4096}")
            a(f"ds_read_b64_tr_b16 {v(a1[b]+2,2)}, {v(vq1)} offset:{ks*4096+512}")
            if withkv:
                a(f"ds_read_b64_tr_b16 {v(ak[b],2)}, {v(vka)} offset:{ks*1024}")
                a(f"ds_read_b64_tr_b16 {v(ak[b]+2,2)}, {v(vka)} offset:{ks*1024+128}")
        n = 7 if withkv else 5
        issue(0)
        for ks in range(16):
            b = ks % NB
            if ks + 1 < 16:
                issue(ks + 1)
                a(f"s_waitcnt lgkmcnt({n})")
            else:
                a("s_waitcnt lgkmcnt(0)")
            a(f"v_mfma_f32_16x16x32_bf16 {v(q0,4)}, {v(a0[b],4)}, {v(xb[b],4)}, {v(q0,4)}")
            a(f"v_mfma_f32_16x16x32_bf16 {v(q1,4)}, {v(a1[b],4)}, {v(xb[b],4)}, {v(q1,4)}")
            a(f"v_mfma_f32_16x16x32_bf16 {v(c0,4)}, {v(a0[b],4)}, {v(ones,4)}, {v(c0,4)}")
            a(f"v_mfma_f32_16x16x32_bf16 {v(c1,4)}, {v(a1[b],4)}, {v(ones,4)}, {v(c1,4)}")
            if withkv:
                a(f"v_mfma_f32_16x16x32_bf16 {v(kv,4)}, {v(ak[b],4)}, {v(xb[b],4)}, {v(kv,4)}")
                a(f"v_mfma_f32_16x16x32_bf16 {v(ck,4)}, {v(ak[b],4)}, {v(ones,4)}, {v(ck,4)}")
            for i in range(4):
                a(f"v_dot2_f32_bf16 {v(s1)}, {v(xb[b]+i)}, {v(ones)}, {v(s1)}")
                a(f"v_dot2_f32_bf16 {v(s2)}, {v(xb[b]+i)}, {v(xb[b]+i)}, {v(s2)}")
    kloop(False)
    a("s_branch p1_kdone")
    a.label("p1_kvloop")
    kloop(True)
    a.label("p1_kdone")
    k.stamp()
    tmp = V.alloc(1, 1, "tmp"); mean = V.alloc(1, 1, "mean"); rs = V.alloc(1, 1, "rstd"); rq = V.alloc(1, 1, "rq")
    a.nop(3)
    reduce_g(k, s1, tmp); reduce_g(k, s2, tmp)
    a(f"v_mul_f32 {v(mean)}, {hexf(1.0/512)}, {v(s1)}")
    a(f"v_mul_f32 {v(s2)}, {hexf(1.0/512)}, {v(s2)}")
    a(f"v_fma_f32 {v(s2)}, -{v(mean)}, {v(mean)}, {v(s2)}")
    a(f"v_max_f32 {v(s2)}, 0, {v(s2)}")
    a(f"v_add_f32 {v(s2)}, {hexf(1e-5)}, {v(s2)}")
    a(f"v_rsq_f32 {v(rs)}, {v(s2)}")
    a("s_nop 0")
    a(f"v_mul_f32 {v(rq)}, {hexf(QSCALE)}, {v(rs)}")
    a.nop(8)
    for (q, c) in ((q0, c0), (q1, c1)):
        for i in range(4):
            a(f"v_fma_f32 {v(q+i)}, -{v(mean)}, {v(c+i)}, {v(q+i)}")
            a(f"v_mul_f32 {v(q+i)}, {v(rq)}, {v(q+i)}")
    pk = V.alloc(4, 4, "pk")
    a(f"v_cvt_pk_bf16_f32 {v(pk)}, {v(q0)}, {v(q0+1)}")
    a(f"v_cvt_pk_bf16_f32 {v(pk+1)}, {v(q0+2)}, {v(q0+3)}")
    a(f"v_cvt_pk_bf16_f32 {v(pk+2)}, {v(q1)}, {v(q1+1)}")
    a(f"v_cvt_pk_bf16_f32 {v(pk+3)}, {v(q1+2)}, {v(q1+3)}")
    a.nop(2)
    a(f"v_permlane16_swap_b32 {v(pk)}, {v(pk+2)}")
    a(f"v_permlane16_swap_b32 {v(pk+1)}, {v(pk+3)}")
    a(f"s_lshl_b32 {s(st0)}, {s(srb)}, 3")
    a(f"s_add_u32 {s(st0)}, {s(st0)}, {s(shg)}")
    a(f"s_lshl_b32 {s(st0)}, {s(st0)}, 3")
    a(f"s_add_u32 {s(st0)}, {s(st0)}, {s(sw)}")
    a(f"s_lshl_b32 {s(st0)}, {s(st0)}, 10")
    a(f"s_add_u32 {s(st0)}, {s(st0)}, {WS_QF}")
    a(f"buffer_store_dwordx4 {v(pk,4)}, {v(vlin)}, {s(sws,4)}, {s(st0)} offen")
    a(f"s_and_b32 {s(st0)}, {s(shg)}, 6")
    a(f"s_cmp_eq_u32 {s(st0)}, {s(sw)}")
    a("s_cbranch_scc0 p1_prep")
    for i in range(4):
        a(f"v_fma_f32 {v(kv+i)}, -{v(mean)}, {v(ck+i)}, {v(kv+i)}")
        a(f"v_mul_f32 {v(kv+i)}, {v(rs)}, {v(kv+i)}")
    pkv = V.alloc(2, 2, "pkv")
    a(f"v_cvt_pk_bf16_f32 {v(pkv)}, {v(kv)}, {v(kv+1)}")
    a(f"v_cvt_pk_bf16_f32 {v(pkv+1)}, {v(kv+2)}, {v(kv+3)}")
    stg = S.alloc(1, 1, "tg")
    a(f"s_lshr_b32 {s(stg)}, {s(shg)}, 1")
    a(f"s_lshr_b32 {s(st0)}, {s(stg)}, 1")
    a(f"s_lshl_b32 {s(st1)}, {s(srb)}, 1")
    a(f"s_add_u32 {s(st0)}, {s(st0)}, {s(st1)}")
    a(f"s_lshl_b32 {s(st0)}, {s(st0)}, 10")
    a(f"s_and_b32 {s(st1)}, {s(stg)}, 1")
    a(f"s_bitcmp1_b32 {s(shg)}, 0")
    a("s_cbranch_scc1 p1_vstore")
    a(f"v_lshrrev_b32 {v(t0)}, 5, {v(vl)}")
    a(f"v_lshlrev_b32 {v(t0)}, 9, {v(t0)}")
    a(f"v_and_b32 {v(t1)}, 15, {v(vl)}")
    a(f"v_lshl_add_u32 {v(t0)}, {v(t1)}, 4, {v(t0)}")
    a(f"v_lshrrev_b32 {v(t1)}, 4, {v(vl)}")
    a(f"v_and_b32 {v(t1)}, 1, {v(t1)}")
    a(f"v_lshl_add_u32 {v(t0)}, {v(t1)}, 3, {v(t0)}")
    a(f"s_lshl_b32 {s(st1)}, {s(st1)}, 8")
    a(f"s_add_u32 {s(st0)}, {s(st0)}, {s(st1)}")
    a(f"s_add_u32 {s(st0)}, {s(st0)}, {WS_KF}")
    a(f"buffer_store_dwordx2 {v(pkv,2)}, {v(t0)}, {s(sws,4)}, {s(st0)} offen")
    a(f"v_dot2_f32_bf16 {v(tmp)}, {v(pkv)}, {v(pkv)}, 0")
    a(f"v_dot2_f32_bf16 {v(s1)}, {v(pkv+1)}, {v(pkv+1)}, {v(tmp)}")
    a.nop(3)
    reduce_g(k, s1, tmp)
    for ror in (8, 4, 2, 1):
        a.nop(2)
        a(f"v_max_f32_dpp {v(s1)}, {v(s1)}, {v(s1)} row_ror:{ror} row_mask:0xf bank_mask:0xf")
    a(f"s_lshl_b32 {s(st0)}, {s(srb)}, 2")
    a(f"s_add_u32 {s(st0)}, {s(st0)}, {s(stg)}")
    a(f"s_lshl_b32 {s(st0)}, {s(st0)}, 2")
    a(f"s_add_u32 {s(st0)}, {s(st0)}, {WS_KMAX}")
    a(f"v_mov_b32 {v(t0)}, 0")
    a("s_mov_b64 exec, 1")
    a(f"buffer_store_dword {v(s1)}, {v(t0)}, {s(sws,4)}, {s(st0)} offen")
    a("s_mov_b64 exec, -1")
    a("s_branch p1_prep")
    a.label("p1_vstore")
    a(f"v_lshrrev_b32 {v(t0)}, 4, {v(vl)}")
    a(f"v_lshlrev_b32 {v(t0)}, 6, {v(t0)}")
    a(f"v_lshrrev_b32 {v(t1)}, 2, {v(vl)}")
    a(f"v_and_b32 {v(t1)}, 1, {v(t1)}")
    a(f"v_lshl_add_u32 {v(t0)}, {v(t1)}, 8, {v(t0)}")
    a(f"v_and_b32 {v(t1)}, 3, {v(vl)}")
    a(f"v_lshl_add_u32 {v(t0)}, {v(t1)}, 1, {v(t0)}")
    a(f"v_lshrrev_b32 {v(t1)}, 3, {v(vl)}")
    a(f"v_and_b32 {v(t1)}, 1, {v(t1)}")
    a(f"v_lshl_add_u32 {v(t0)}, {v(t1)}, 3, {v(t0)}")
    a(f"s_lshl_b32 {s(st1)}, {s(st1)}, 9")
    a(f"s_add_u32 {s(st0)}, {s(st0)}, {s(st1)}")
    a(f"s_add_u32 {s(st0)}, {s(st0)}, {WS_VF}")
    a(f"buffer_store_short {v(pkv)}, {v(t0)}, {s(sws,4)}, {s(st0)} offen")
    a(f"buffer_store_short_d16_hi {v(pkv)}, {v(t0)}, {s(sws,4)}, {s(st0)} offen offset:16")
    a(f"buffer_store_short {v(pkv+1)}, {v(t0)}, {s(sws,4)}, {s(st0)} offen offset:32")
    a(f"buffer_store_short_d16_hi {v(pkv+1)}, {v(t0)}, {s(sws,4)}, {s(st0)} offen offset:48")
    a.label("p1_prep")
    k.stamp()
    gen_prep(k, P, su, sws, LPREP, vl, vlin, (t0, t1, t2), (st0, st1, st2))
    a.label(f"{k.name}_fin")
    if STAMPS: a("s_waitcnt vmcnt(0)")
    k.stamp(); k.stamp_rt()
    k.dump_stamps(P["ws"], 0)
    k.finish()
    return k

def gen_prep(k, P, su, sws, LPREP, vl, vlin, vt, stmp):
    a = k.a; V = k.V; S = k.S
    t0, t1, t2 = vt; st0, st1, st2 = stmp
    sw = k.sw
    a(f"s_cmp_ge_u32 {s(su)}, 1600")
    a(f"s_cbranch_scc1 {k.name}_fin")
    ssrc = S.alloc(4, 4, "srd_prep")
    sstride = S.alloc(1, 1, "stride"); ssoff = S.alloc(1, 1, "soff"); sdst = S.alloc(1, 1, "dst"); sdst2 = S.alloc(1, 1, "dstep")
    slds = S.alloc(1, 1, "lds")
    va0 = V.alloc(1, 1, "prep_a0"); va1 = V.alloc(1, 1, "prep_a1"); vsrc = V.alloc(1, 1, "prep_src")
    a(f"s_lshl_b32 {s(slds)}, {s(sw)}, 11")
    a(f"s_add_u32 {s(slds)}, {s(slds)}, {LPREP}")
    def lanes():
        a(f"v_lshrrev_b32 {v(t0)}, 4, {v(vl)}")
        a(f"v_lshrrev_b32 {v(t1)}, 2, {v(vl)}")
        a(f"v_and_b32 {v(t1)}, 3, {v(t1)}")
        a(f"v_and_b32 {v(t2)}, 3, {v(vl)}")
    def set_srd(ptr, nbytes):
        a(f"s_mov_b32 {s(ssrc)}, {s(ptr)}")
        a(f"s_and_b32 {s(ssrc+1)}, {s(ptr+1)}, 0xffff")
        a(f"s_mov_b32 {s(ssrc+2)}, {nbytes}")
        a(f"s_mov_b32 {s(ssrc+3)}, 0x20000")
    a(f"s_cmp_ge_u32 {s(su)}, 256")
    a(f"s_cbranch_scc1 {k.name}_prep_in")
    set_srd(P["wo"], 512 * 512 * 2)
    a(f"s_mov_b32 {s(sstride)}, 1024")
    a(f"s_lshr_b32 {s(st0)}, {s(su)}, 4")
    a(f"s_and_b32 {s(st1)}, {s(su)}, 15")
    a(f"s_lshl_b32 {s(ssoff)}, {s(st0)}, 15")
    a(f"s_lshl_b32 {s(st2)}, {s(st1)}, 6")
    a(f"s_add_u32 {s(ssoff)}, {s(ssoff)}, {s(st2)}")
    a(f"s_lshl_b32 {s(sdst)}, {s(st1)}, 15")
    a(f"s_lshl_b32 {s(st2)}, {s(st0)}, 10")
    a(f"s_add_u32 {s(sdst)}, {s(sdst)}, {s(st2)}")
    a(f"s_add_u32 {s(sdst)}, {s(sdst)}, {WS_WOF}")
    a(f"s_mov_b32 {s(sdst2)}, {16*1024}")
    lanes()
    a(f"v_and_b32 {v(va0)}, 1, {v(t0)}")
    a(f"v_lshlrev_b32 {v(va0)}, 4, {v(va0)}")
    a(f"v_add_u32 {v(va0)}, {v(va0)}, {v(t1)}")
    a(f"v_lshrrev_b32 {v(t0)}, 1, {v(t0)}")
    a(f"v_lshl_add_u32 {v(va0)}, {v(t0)}, 2, {v(va0)}")
    a(f"v_lshlrev_b32 {v(va0)}, 6, {v(va0)}")
    a(f"v_lshl_add_u32 {v(va0)}, {v(t2)}, 4, {v(va0)}")
    a(f"s_mov_b32 {s(st0)}, {8*64}")
    a(f"s_mov_b32 {s(st1)}, 8")
    a(f"s_branch {k.name}_prep_go")
    a.label(f"{k.name}_prep_in")
    a(f"s_cmp_ge_u32 {s(su)}, {256+896}")
    a(f"s_cbranch_scc1 {k.name}_prep_out")
    set_srd(P["win"], 512 * 1792 * 2)
    a(f"s_mov_b32 {s(sstride)}, 3584")
    a(f"s_sub_u32 {s(st2)}, {s(su)}, 256")
    a(f"s_and_b32 {s(st0)}, {s(st2)}, 15")
    a(f"s_lshr_b32 {s(st1)}, {s(st2)}, 4")
    a(f"s_mul_i32 {s(ssoff)}, {s(st0)}, {32*3584}")
    a(f"s_lshl_b32 {s(st2)}, {s(st1)}, 6")
    a(f"s_add_u32 {s(ssoff)}, {s(ssoff)}, {s(st2)}")
    a(f"s_lshl_b32 {s(sdst)}, {s(st1)}, 15")
    a(f"s_lshl_b32 {s(st2)}, {s(st0)}, 10")
    a(f"s_add_u32 {s(sdst)}, {s(sdst)}, {s(st2)}")
    a(f"s_add_u32 {s(sdst)}, {s(sdst)}, {WS_WINF}")
    a(f"s_mov_b32 {s(sdst2)}, {16*1024}")
    lanes()
    a(f"v_lshl_add_u32 {v(va0)}, {v(t0)}, 3, {v(t1)}")
    a(f"v_lshlrev_b32 {v(va0)}, 6, {v(va0)}")
    a(f"v_lshl_add_u32 {v(va0)}, {v(t2)}, 3, {v(va0)}")
    a(f"s_mov_b32 {s(st0)}, {4*64}")
    a(f"s_mov_b32 {s(st1)}, 32")
    a(f"s_branch {k.name}_prep_go")
    a.label(f"{k.name}_prep_out")
    set_srd(P["wout"], 896 * 512 * 2)
    a(f"s_mov_b32 {s(sstride)}, 1024")
    a(f"s_sub_u32 {s(st2)}, {s(su)}, {256+896}")
    a(f"s_lshr_b32 {s(st0)}, {s(st2)}, 4")
    a(f"s_and_b32 {s(st1)}, {s(st2)}, 15")
    a(f"s_lshl_b32 {s(ssoff)}, {s(st0)}, 15")
    a(f"s_lshl_b32 {s(st2)}, {s(st1)}, 6")
    a(f"s_add_u32 {s(ssoff)}, {s(ssoff)}, {s(st2)}")
    a(f"s_mul_i32 {s(sdst)}, {s(st1)}, {2*28*1024}")
    a(f"s_lshl_b32 {s(st2)}, {s(st0)}, 10")
    a(f"s_add_u32 {s(sdst)}, {s(sdst)}, {s(st2)}")
    a(f"s_add_u32 {s(sdst)}, {s(sdst)}, {WS_WOUTF}")
    a(f"s_mov_b32 {s(sdst2)}, {28*1024}")
    lanes()
    a(f"v_lshl_add_u32 {v(va0)}, {v(t0)}, 2, {v(t1)}")
    a(f"v_lshlrev_b32 {v(va0)}, 6, {v(va0)}")
    a(f"v_lshl_add_u32 {v(va0)}, {v(t2)}, 4, {v(va0)}")
    a(f"s_mov_b32 {s(st0)}, {16*64}")
    a(f"s_mov_b32 {s(st1)}, 8")
    a.label(f"{k.name}_prep_go")
    a(f"v_lshrrev_b32 {v(t0)}, 2, {v(vl)}")
    a(f"v_mul_lo_u32 {v(t0)}, {v(t0)}, {s(sstride)}")
    a(f"v_and_b32 {v(t1)}, 3, {v(vl)}")
    a(f"v_lshl_add_u32 {v(vsrc)}, {v(t1)}, 4, {v(t0)}")
    a(f"s_mov_b32 m0, {s(slds)}")
    a(f"s_lshl_b32 {s(st2)}, {s(sstride)}, 4")
    a(f"buffer_load_dwordx4 {v(vsrc)}, {s(ssrc,4)}, {s(ssoff)} offen lds")
    a(f"s_add_u32 m0, {s(slds)}, 1024")
    a(f"s_add_u32 {s(ssoff)}, {s(ssoff)}, {s(st2)}")
    a(f"buffer_load_dwordx4 {v(vsrc)}, {s(ssrc,4)}, {s(ssoff)} offen lds")
    a(f"v_add_u32 {v(va0)}, {s(slds)}, {v(va0)}")
    a(f"v_add_u32 {v(va1)}, {s(st0)}, {v(va0)}")
    fr = V.alloc(8, 4, "prep_frag")
    a("s_waitcnt vmcnt(0)")
    a(f"ds_read_b64_tr_b16 {v(fr,2)}, {v(va0)}")
    a(f"ds_read_b64_tr_b16 {v(fr+2,2)}, {v(va1)}")
    a(f"v_add_u32 {v(va0)}, {s(st1)}, {v(va0)}")
    a(f"v_add_u32 {v(va1)}, {s(st1)}, {v(va1)}")
    a(f"ds_read_b64_tr_b16 {v(fr+4,2)}, {v(va0)}")
    a(f"ds_read_b64_tr_b16 {v(fr+6,2)}, {v(va1)}")
    a("s_waitcnt lgkmcnt(0)")
    a(f"buffer_store_dwordx4 {v(fr,4)}, {v(vlin)}, {s(sws,4)}, {s(sdst)} offen")
    a(f"s_add_u32 {s(sdst)}, {s(sdst)}, {s(sdst2)}")
    a(f"buffer_store_dwordx4 {v(fr+4,4)}, {v(vlin)}, {s(sws,4)}, {s(sdst)} offen")


BOUND_T = 40.0
ONES_ROWS = int(os.environ.get("ONES_ROWS", "1"))
def attn_core(k, qf, LK=0, LV=65536, LONE=131072, LX=None):
    a = k.a; V = k.V; S = k.S; vl = k.vl; sw = k.sw
    U = 4
    t0 = V.alloc(1); t1 = V.alloc(1); t2 = V.alloc(1)
    Sb = [V.alloc(16, 4, "S0"), V.alloc(16, 4, "S1")]
    Pp = V.alloc(8, 4, "P"); O = [V.alloc(16, 4, "OA"), V.alloc(16, 4, "OB")]
    Kb = [V.alloc(4, 4, "K0"), V.alloc(4, 4, "K1")]
    Vb = [V.alloc(8, 4, "V0"), V.alloc(8, 4, "V1")]
    vka = V.alloc(1, 1, "kaddr"); vva = V.alloc(1, 1, "vaddr"); vinc = V.alloc(1, 1, "vinc")
    skh = S.alloc(1, 1, "kh")
    a(f"s_lshr_b32 {s(skh)}, {s(sw)}, 2")
    a(f"s_lshl_b32 {s(skh)}, {s(skh)}, 15")
    a(f"v_lshlrev_b32 {v(vka)}, 4, {v(vl)}")
    a(f"v_add_u32 {v(vka)}, {s(skh)}, {v(vka)}")
    if LK: a(f"v_add_u32 {v(vka)}, {LK}, {v(vka)}")
    a(f"v_and_b32 {v(t0)}, 31, {v(vl)}")
    a(f"v_lshrrev_b32 {v(t1)}, 5, {v(vl)}")
    a(f"v_lshlrev_b32 {v(t1)}, 8, {v(t1)}")
    a(f"v_lshl_add_u32 {v(vva)}, {v(t0)}, 4, {v(t1)}")
    a(f"v_add_u32 {v(vva)}, {s(skh)}, {v(vva)}")
    a(f"v_add_u32 {v(vva)}, {LV}, {v(vva)}")
    a(f"v_subrev_u32 {v(t1)}, 20, {v(t0)}")
    a(f"v_cmp_gt_u32 vcc, 8, {v(t1)}")
    a(f"v_mov_b32 {v(t1)}, {LONE + 16}")
    a(f"v_mov_b32 {v(vinc)}, {LONE + 64}")
    a(f"v_cndmask_b32 {v(t1)}, {v(t1)}, {v(vinc)}, vcc")
    a(f"v_cmp_eq_u32 vcc, 16, {v(t0)}")
    a(f"v_mov_b32 {v(vinc)}, {LONE}")
    a("s_nop 0")
    a(f"v_cndmask_b32 {v(t1)}, {v(t1)}, {v(vinc)}, vcc")
    a(f"v_cmp_gt_u32 vcc, 16, {v(t0)}")
    a(f"v_mov_b32 {v(vinc)}, {U*1024}")
    a("s_nop 0")
    a(f"v_cndmask_b32 {v(vva)}, {v(t1)}, {v(vva)}, vcc")
    a(f"v_cndmask_b32 {v(vinc)}, 0, {v(vinc)}, vcc")
    for n, q in enumerate(qf):
        t = t0 if n == 0 else t2
        a(f"v_dot2_f32_bf16 {v(t)}, {v(q)}, {v(q)}, 0")
        for i in range(1, 4):
            a(f"v_dot2_f32_bf16 {v(t)}, {v(q+i)}, {v(q+i)}, {v(t)}")
        a.nop(3)
        a(f"v_mov_b32 {v(t1)}, {v(t)}")
        a.nop(2)
        a(f"v_permlane32_swap_b32 {v(t)}, {v(t1)}")
        a(f"v_add_f32 {v(t)}, {v(t)}, {v(t1)}")
    a(f"v_max_f32 {v(t0)}, {v(t0)}, {v(t2)}")
    a(f"v_mul_f32 {v(t0)}, {v(t0)}, {v(k.vkmax)}")
    for o in O:
        for i in range(16): a(f"v_mov_b32 {v(o+i)}, 0")
    sT = S.alloc(1, 1, "T")
    a(f"v_mov_b32 {v(t1)}, {hexf(BOUND_T*BOUND_T/1.05)}")
    a(f"v_cmp_nle_f32 vcc, {v(t0)}, {v(t1)}")
    a("s_nop 1")
    a("s_cbranch_vccnz attn_slow")
    for i in range(4, 8): a(f"v_mov_b32 {v(Pp+i)}, 0")
    for i in range(4, 8): a(f"v_mov_b32 {v(Vb[1]+i)}, 0")
    a(f"v_mov_b32 {v(Sb[1]+14)}, 0xff800000")
    a(f"v_mov_b32 {v(Sb[1]+15)}, 0xff800000")
    a(f"v_mov_b32 {v(Sb[1]+14)}, 0")
    a(f"v_mov_b32 {v(Sb[1]+15)}, 0")
    a(f"ds_read_b128 {v(Kb[0],4)}, {v(vka)}")
    a(f"ds_read_b128 {v(Vb[0],4)}, {v(vva)}")
    a(f"ds_read_b128 {v(Vb[0]+4,4)}, {v(vva)} offset:512")
    a("s_waitcnt lgkmcnt(2)")
    a(f"v_mfma_f32_32x32x16_bf16 {v(Sb[0],16)}, {v(Kb[0],4)}, {v(qf[0],4)}, 0")
    a(f"s_mov_b32 {s(sT)}, 0")
    a.nop(12)
    a(".p2align 6")
    a.label("attn_loop")
    units = [(t, q) for t in range(U) for q in range(2)]
    n = len(units)
    for u, (t, q) in enumerate(units):
        Sc = Sb[u % 2]; Sn = Sb[(u + 1) % 2]
        pt, pq = (t, 0) if q == 1 else (t - 1, 1)
        nt, nq = (t, 1) if q == 0 else (t + 1, 0)
        e = lambda i: a(f"v_exp_f32 {v(Sc+i)}, {v(Sc+i)}")
        c = lambda i: a(f"v_cvt_pk_bf16_f32 {v(Pp+i)}, {v(Sc+2*i)}, {v(Sc+2*i+1)}")
        e(0)
        a(f"v_cvt_pk_bf16_f32 {v(Pp+7)}, {v(Sn+14)}, {v(Sn+15)}")
        e(1); e(2)
        a(f"v_mfma_f32_32x32x16_bf16 {v(O[pq],16)}, {v(Vb[pt%2]+4,4)}, {v(Pp+4,4)}, {v(O[pq],16)}")
        if q == 0:
            a(f"ds_read_b128 {v(Kb[(t+1)%2],4)}, {v(vka)} offset:{(t+1)*1024}")
            a(f"ds_read_b128 {v(Vb[(t+1)%2],4)}, {v(vva)} offset:{(t+1)*1024}")
            a(f"ds_read_b128 {v(Vb[(t+1)%2]+4,4)}, {v(vva)} offset:{(t+1)*1024+512}")
        e(3); c(0); e(4); e(5); c(1); e(6); e(7)
        if q == 1: a("s_waitcnt lgkmcnt(2)")
        a(f"v_mfma_f32_32x32x16_bf16 {v(Sn,16)}, {v(Kb[nt%2],4)}, {v(qf[nq],4)}, 0")
        c(2); e(8); e(9); c(3); e(10); e(11); c(4)
        if q == 0: a("s_waitcnt lgkmcnt(3)")
        a(f"v_mfma_f32_32x32x16_bf16 {v(O[q],16)}, {v(Vb[t%2],4)}, {v(Pp,4)}, {v(O[q],16)}")
        e(12); e(13); c(5); e(14); e(15)
        if u == n - 1:
            a(f"v_add_u32 {v(vka)}, {U*1024}, {v(vka)}")
            a(f"v_add_u32 {v(vva)}, {v(vinc)}, {v(vva)}")
            a(f"s_add_u32 {s(sT)}, {s(sT)}, {U}")
            a(f"s_cmp_lt_u32 {s(sT)}, 32")
        c(6)
    a("s_cbranch_scc1 attn_loop")
    Sl = Sb[(n - 1) % 2]
    a(f"v_cvt_pk_bf16_f32 {v(Pp+7)}, {v(Sl+14)}, {v(Sl+15)}")
    a.nop(2)
    a(f"v_mfma_f32_32x32x16_bf16 {v(O[1],16)}, {v(Vb[(U-1)%2]+4,4)}, {v(Pp+4,4)}, {v(O[1],16)}")
    a("s_waitcnt lgkmcnt(0)")
    a("s_branch attn_done")
    a.label("attn_slow")
    mq = [V.alloc(1, 1, "mA"), V.alloc(1, 1, "mB")]
    mnew = Kb[1]; alpha = Kb[1] + 1
    for q in range(2):
        a(f"v_mov_b32 {v(mq[q])}, 0xff800000")
        a(f"s_mov_b32 {s(sT)}, 0")
        a.label(f"attn_slow_loop{q}")
        Sc = Sb[0]
        a(f"ds_read_b128 {v(Kb[0],4)}, {v(vka)}")
        a(f"ds_read_b128 {v(Vb[0],4)}, {v(vva)}")
        a(f"ds_read_b128 {v(Vb[0]+4,4)}, {v(vva)} offset:512")
        a("s_waitcnt lgkmcnt(0)")
        a(f"v_mfma_f32_32x32x16_bf16 {v(Sc,16)}, {v(Kb[0],4)}, {v(qf[q],4)}, 0")
        a.nop(12)
        a(f"v_max3_f32 {v(mnew)}, {v(Sc)}, {v(Sc+1)}, {v(mq[q])}")
        for i in range(2, 16, 2):
            a(f"v_max3_f32 {v(mnew)}, {v(Sc+i)}, {v(Sc+i+1)}, {v(mnew)}")
        a(f"v_mov_b32 {v(alpha)}, {v(mnew)}")
        a.nop(2)
        a(f"v_permlane32_swap_b32 {v(mnew)}, {v(alpha)}")
        a(f"v_max_f32 {v(mnew)}, {v(mnew)}, {v(alpha)}")
        a(f"v_sub_f32 {v(alpha)}, {v(mq[q])}, {v(mnew)}")
        a(f"v_exp_f32 {v(alpha)}, {v(alpha)}")
        a(f"v_mov_b32 {v(mq[q])}, {v(mnew)}")
        for i in range(16):
            a(f"v_sub_f32 {v(Sc+i)}, {v(Sc+i)}, {v(mnew)}")
            a(f"v_exp_f32 {v(Sc+i)}, {v(Sc+i)}")
        for i in range(9):
            a(f"v_mul_f32 {v(O[q]+i)}, {v(alpha)}, {v(O[q]+i)}")
        for i in range(8):
            a(f"v_cvt_pk_bf16_f32 {v(Pp+i)}, {v(Sc+2*i)}, {v(Sc+2*i+1)}")
        a.nop(2)
        a(f"v_mfma_f32_32x32x16_bf16 {v(O[q],16)}, {v(Vb[0],4)}, {v(Pp,4)}, {v(O[q],16)}")
        a(f"v_mfma_f32_32x32x16_bf16 {v(O[q],16)}, {v(Vb[0]+4,4)}, {v(Pp+4,4)}, {v(O[q],16)}")
        a(f"v_add_u32 {v(vka)}, 1024, {v(vka)}")
        a(f"v_lshrrev_b32 {v(t1)}, 2, {v(vinc)}")
        a(f"v_add_u32 {v(vva)}, {v(t1)}, {v(vva)}")
        a(f"s_add_u32 {s(sT)}, {s(sT)}, 1")
        a(f"s_cmp_lt_u32 {s(sT)}, 32")
        a.nop(8)
        a(f"s_cbranch_scc1 attn_slow_loop{q}")
        if q == 0:
            a(f"v_subrev_u32 {v(vka)}, {32*1024}, {v(vka)}")
            a(f"v_lshlrev_b32 {v(t1)}, 3, {v(vinc)}")
            a(f"v_sub_u32 {v(vva)}, {v(vva)}, {v(t1)}")
    a("s_branch attn_comb")
    a.label("attn_done")
    a(f"v_mov_b32 {v(mq[0])}, 0")
    a(f"v_mov_b32 {v(mq[1])}, 0")
    a.label("attn_comb")
    a.nop(16)
    xa = t0; xb = t1
    a(f"s_mul_i32 {s(sT)}, {s(sw)}, 2560")
    a(f"v_lshlrev_b32 {v(xa)}, 4, {v(vl)}")
    a(f"v_add_u32 {v(xa)}, {s(sT)}, {v(xa)}")
    a(f"v_add_u32 {v(xa)}, {LX}, {v(xa)}")
    a(f"v_lshlrev_b32 {v(xb)}, 3, {v(vl)}")
    a(f"v_add_u32 {v(xb)}, {s(sT)}, {v(xb)}")
    a(f"v_add_u32 {v(xb)}, {LX + 2048}, {v(xb)}")
    R = Sb[0]
    Kp = Sb[1]
    a(f"s_cmp_ge_u32 {s(sw)}, 4")
    a("s_cbranch_scc1 attn_comb1")
    for keep, send, lab in ((0, 1, None), (1, 0, "attn_comb1")):
        if lab: a.label(lab)
        a(f"v_mov_b32 {v(O[send]+9)}, {v(mq[send])}")
        a(f"ds_write_b128 {v(xa)}, {v(O[send],4)}")
        a(f"ds_write_b128 {v(xa)}, {v(O[send]+4,4)} offset:1024")
        a(f"ds_write_b64 {v(xb)}, {v(O[send]+8,2)}")
        for i in range(9): a(f"v_mov_b32 {v(Kp+i)}, {v(O[keep]+i)}")
        a(f"v_mov_b32 {v(Kp+9)}, {v(mq[keep])}")
        if not lab: a("s_branch attn_comb2")
    a.label("attn_comb2")
    a(f"s_xor_b32 {s(sT)}, {s(sw)}, 4")
    a(f"s_sub_u32 {s(sT)}, {s(sT)}, {s(sw)}")
    a(f"s_mul_i32 {s(sT)}, {s(sT)}, 2560")
    a(f"v_add_u32 {v(xa)}, {s(sT)}, {v(xa)}")
    a(f"v_add_u32 {v(xb)}, {s(sT)}, {v(xb)}")
    a("s_waitcnt lgkmcnt(0)")
    a("s_barrier")
    a(f"ds_read_b128 {v(R,4)}, {v(xa)}")
    a(f"ds_read_b128 {v(R+4,4)}, {v(xa)} offset:1024")
    a(f"ds_read_b64 {v(R+8,2)}, {v(xb)}")
    a("s_waitcnt lgkmcnt(0)")
    a(f"v_max_f32 {v(t2)}, {v(Kp+9)}, {v(R+9)}")
    a(f"v_sub_f32 {v(Kp+9)}, {v(Kp+9)}, {v(t2)}")
    a(f"v_sub_f32 {v(R+9)}, {v(R+9)}, {v(t2)}")
    a(f"v_exp_f32 {v(Kp+9)}, {v(Kp+9)}")
    a(f"v_exp_f32 {v(R+9)}, {v(R+9)}")
    a("s_nop 0")
    for i in range(9):
        a(f"v_mul_f32 {v(Kp+i)}, {v(Kp+9)}, {v(Kp+i)}")
        a(f"v_fmac_f32 {v(Kp+i)}, {v(R+9)}, {v(R+i)}")
    if ONES_ROWS == 1:
        a(f"v_mov_b32 {v(t2)}, {v(Kp+8)}")
        a.nop(2)
        a(f"v_permlane32_swap_b32 {v(Kp+8)}, {v(t2)}")
        a(f"v_add_f32 {v(Kp+8)}, {v(Kp+8)}, {v(t2)}")
    a(f"v_rcp_f32 {v(t2)}, {v(Kp+8)}")
    a("s_nop 0")
    for i in range(8): a(f"v_mul_f32 {v(Kp+i)}, {v(t2)}, {v(Kp+i)}")
    of = Pp
    for i in range(4): a(f"v_cvt_pk_bf16_f32 {v(of+i)}, {v(Kp+2*i)}, {v(Kp+2*i+1)}")
    return of

def gen_K2():
    LONE = 131072; LX = 131072 + 5632
    k = K("p2_kernel", 256, lds=LX + 8 * 2560)
    a = k.a; V = k.V; S = k.S
    P = k.prologue(["ws"])
    k.stamp_rt(); k.stamp()
    sw, vl = k.sw, k.vl
    srb = S.alloc(1, 1, "rb"); shg = S.alloc(1, 1, "hg")
    wg_rb_hg(k, srb, shg)
    sws = k.srd(P["ws"], WS_END, "srd_ws")
    st0 = S.alloc(1); st1 = S.alloc(1); S.mark(98, 2, "tmp")
    vlin = V.alloc(1, 1, "lin16")
    a(f"v_lshlrev_b32 {v(vlin)}, 4, {v(vl)}")
    qf = [V.alloc(4, 4, "qfA"), V.alloc(4, 4, "qfB")]; km = V.alloc(2, 2, "km")
    a(f"s_lshl_b32 {s(st0)}, {s(srb)}, 3")
    a(f"s_add_u32 {s(st0)}, {s(st0)}, {s(shg)}")
    a(f"s_lshl_b32 {s(st0)}, {s(st0)}, 2")
    a(f"s_and_b32 {s(st1)}, {s(sw)}, 3")
    a(f"s_add_u32 {s(st0)}, {s(st0)}, {s(st1)}")
    a(f"s_lshl_b32 {s(st0)}, {s(st0)}, 11")
    a(f"s_add_u32 {s(st0)}, {s(st0)}, {WS_QF}")
    a(f"buffer_load_dwordx4 {v(qf[0],4)}, {v(vlin)}, {s(sws,4)}, {s(st0)} offen")
    a(f"buffer_load_dwordx4 {v(qf[1],4)}, {v(vlin)}, {s(sws,4)}, {s(st0)} offen offset:1024")
    t0 = V.alloc(1)
    a(f"v_lshlrev_b32 {v(t0)}, 3, {v(vl)}")
    a(f"s_mov_b32 {s(st0)}, {WS_KMAX}")
    a(f"buffer_load_dwordx2 {v(km,2)}, {v(t0)}, {s(sws,4)}, {s(st0)} offen")
    a(f"s_lshl_b32 {s(st0)}, {s(sw)}, 14")
    for i in range(16):
        a(f"s_add_u32 m0, {s(st0)}, {i*1024}")
        a(f"s_add_u32 s98, {s(st0)}, {WS_KF + i*1024}")
        a(f"buffer_load_dwordx4 {v(vlin)}, {s(sws,4)}, s98 offen lds")
    on = V.alloc(4, 4, "ones")
    if ONES_ROWS == 1:
        a(f"v_and_b32 {v(t0)}, 31, v0")
        a(f"v_cmp_eq_u32 vcc, 0, {v(t0)}")
        a(f"v_mov_b32 {v(t0)}, {ONES}")
        a("s_nop 0")
        for i in range(4): a(f"v_cndmask_b32 {v(on+i)}, 0, {v(t0)}, vcc")
    else:
        for i in range(4): a(f"v_mov_b32 {v(on+i)}, {ONES}")
    a(f"v_lshlrev_b32 {v(t0)}, 4, v0")
    a(f"v_add_u32 {v(t0)}, {LONE}, {v(t0)}")
    a(f"v_cmp_gt_u32 vcc, 352, v0")
    a("s_and_saveexec_b64 s[96:97], vcc"); S.mark(96, 2, "exec")
    a("s_cbranch_execz p2_skipones")
    a(f"ds_write_b128 {v(t0)}, {v(on,4)}")
    a.label("p2_skipones")
    a("s_mov_b64 exec, s[96:97]")
    V.free(on, 4)
    a("s_waitcnt vmcnt(16)")
    k.vkmax = V.alloc(1, 1, "kmax")
    a(f"v_max_f32 {v(k.vkmax)}, {v(km)}, {v(km+1)}")
    for ror in (8, 4, 2, 1):
        a.nop(2)
        a(f"v_max_f32_dpp {v(k.vkmax)}, {v(k.vkmax)}, {v(k.vkmax)} row_ror:{ror} row_mask:0xf bank_mask:0xf")
    reduce_g(k, k.vkmax, t0, "v_max_f32")
    V.free(t0); V.free(km, 2)
    k.stamp()
    a("s_waitcnt vmcnt(0) lgkmcnt(0)")
    k.stamp()
    a("s_barrier")
    k.stamp(); k.stamp_rt()
    of = attn_core(k, qf, 0, 65536, LONE, LX)
    k.stamp_rt(); k.stamp()
    a(f"s_lshl_b32 {s(st0)}, {s(srb)}, 2")
    a(f"s_and_b32 {s(st1)}, {s(sw)}, 3")
    a(f"s_add_u32 {s(st0)}, {s(st0)}, {s(st1)}")
    a(f"s_lshl_b32 {s(st0)}, {s(st0)}, 4")
    a(f"s_lshl_b32 {s(st1)}, {s(shg)}, 1")
    a(f"s_add_u32 {s(st0)}, {s(st0)}, {s(st1)}")
    a(f"s_lshr_b32 {s(st1)}, {s(sw)}, 2")
    a(f"s_add_u32 {s(st0)}, {s(st0)}, {s(st1)}")
    a(f"s_lshl_b32 {s(st0)}, {s(st0)}, 10")
    a(f"s_add_u32 {s(st0)}, {s(st0)}, {WS_OF}")
    a(f"buffer_store_dwordx4 {v(of,4)}, {v(vlin)}, {s(sws,4)}, {s(st0)} offen")
    if STAMPS: a("s_waitcnt vmcnt(0)")
    k.stamp(); k.stamp_rt()
    k.dump_stamps(P["ws"], 1)
    k.finish()
    return k


def unpack_lo(a, d, src): a(f"v_lshlrev_b32 {v(d)}, 16, {v(src)}")
def unpack_hi(a, d, src): a(f"v_and_b32 {v(d)}, 0xffff0000, {v(src)}")

def gen_K3():
    k = K("p3_kernel", 256, lds=131072)
    a = k.a; V = k.V; S = k.S
    P = k.prologue(["x", "ws"])
    k.stamp_rt(); k.stamp()
    sw, vl = k.sw, k.vl
    srb = S.alloc(1, 1, "rb"); scb = S.alloc(1, 1, "cb")
    wg_rb_hg(k, srb, scb)
    sws = k.srd(P["ws"], WS_END, "srd_ws"); sx = k.srd(P["x"], S_ * D * 2, "srd_x")
    st0 = S.alloc(1); st1 = S.alloc(1); st2 = S.alloc(1); S.mark(98, 2, "tmp")
    vlin = V.alloc(1, 1, "lin16"); t0 = V.alloc(1); t1 = V.alloc(1)
    a(f"v_lshlrev_b32 {v(vlin)}, 4, {v(vl)}")
    a(f"s_lshl_b32 {s(st2)}, {s(sw)}, 13")
    a(f"s_lshl_b32 {s(st0)}, {s(srb)}, 16"); a(f"s_add_u32 {s(st0)}, {s(st0)}, {s(st2)}"); a(f"s_add_u32 {s(st0)}, {s(st0)}, {WS_OF}")
    a(f"s_lshl_b32 {s(st1)}, {s(scb)}, 16"); a(f"s_add_u32 {s(st1)}, {s(st1)}, {s(st2)}"); a(f"s_add_u32 {s(st1)}, {s(st1)}, {WS_WOF}")
    for i in range(8):
        a(f"s_add_u32 m0, {s(st2)}, {65536 + i*1024}")
        a(f"s_add_u32 s98, {s(st1)}, {i*1024}")
        a(f"buffer_load_dwordx4 {v(vlin)}, {s(sws,4)}, s98 offen lds")
    for i in range(8):
        a(f"s_add_u32 m0, {s(st2)}, {i*1024}")
        a(f"s_add_u32 s98, {s(st0)}, {i*1024}")
        a(f"buffer_load_dwordx4 {v(vlin)}, {s(sws,4)}, s98 offen lds")
    xr = V.alloc(4, 4, "xres")
    a(f"v_and_b32 {v(t0)}, 15, {v(vl)}")
    a(f"v_lshlrev_b32 {v(t0)}, 10, {v(t0)}")
    a(f"v_lshrrev_b32 {v(t1)}, 4, {v(vl)}")
    a(f"v_lshl_add_u32 {v(t0)}, {v(t1)}, 4, {v(t0)}")
    a(f"s_lshl_b32 {s(st0)}, {s(srb)}, 16")
    a(f"s_lshr_b32 {s(st1)}, {s(sw)}, 1"); a(f"s_lshl_b32 {s(st1)}, {s(st1)}, 14"); a(f"s_add_u32 {s(st0)}, {s(st0)}, {s(st1)}")
    a(f"s_lshl_b32 {s(st1)}, {s(scb)}, 7"); a(f"s_add_u32 {s(st0)}, {s(st0)}, {s(st1)}")
    a(f"s_and_b32 {s(st1)}, {s(sw)}, 1"); a(f"s_lshl_b32 {s(st1)}, {s(st1)}, 6"); a(f"s_add_u32 {s(st0)}, {s(st0)}, {s(st1)}")
    a(f"buffer_load_dwordx4 {v(xr,4)}, {v(t0)}, {s(sx,4)}, {s(st0)} offen")
    vb = V.alloc(1, 1, "baddr"); va = V.alloc(1, 1, "aaddr")
    a(f"s_lshr_b32 {s(st0)}, {s(sw)}, 1"); a(f"s_lshl_b32 {s(st0)}, {s(st0)}, 14")
    a(f"v_add_u32 {v(vb)}, {s(st0)}, {v(vlin)}")
    a(f"s_and_b32 {s(st0)}, {s(sw)}, 1"); a(f"s_lshl_b32 {s(st0)}, {s(st0)}, 15"); a(f"s_add_u32 {s(st0)}, {s(st0)}, 65536")
    a(f"v_add_u32 {v(va)}, {s(st0)}, {v(vlin)}")
    acc = [V.alloc(4, 4, "acc0"), V.alloc(4, 4, "acc1")]
    for r in acc:
        for i in range(4): a(f"v_mov_b32 {v(r+i)}, 0")
    NB = 3
    B = [V.alloc(4, 4) for _ in range(NB)]; A0 = [V.alloc(4, 4) for _ in range(NB)]; A1 = [V.alloc(4, 4) for _ in range(NB)]
    k.stamp()
    a("s_waitcnt vmcnt(0)")
    k.stamp()
    a("s_barrier")
    k.stamp()
    def issue(ks):
        b = ks % NB
        a(f"ds_read_b128 {v(B[b],4)}, {v(vb)} offset:{ks*1024}")
        a(f"ds_read_b128 {v(A0[b],4)}, {v(va)} offset:{ks*1024}")
        a(f"ds_read_b128 {v(A1[b],4)}, {v(va)} offset:{16384 + ks*1024}")
    issue(0); issue(1)
    for ks in range(16):
        b = ks % NB
        if ks + 2 < 16: issue(ks + 2)
        n = 3 * min(2, 15 - ks)
        a(f"s_waitcnt lgkmcnt({n})")
        a(f"v_mfma_f32_16x16x32_bf16 {v(acc[0],4)}, {v(A0[b],4)}, {v(B[b],4)}, {v(acc[0],4)}")
        a(f"v_mfma_f32_16x16x32_bf16 {v(acc[1],4)}, {v(A1[b],4)}, {v(B[b],4)}, {v(acc[1],4)}")
    a.nop(8)
    k.stamp()
    xf = V.alloc(8, 4, "xf")
    for i in range(4):
        unpack_lo(a, xf + 2*i, xr + i); unpack_hi(a, xf + 2*i + 1, xr + i)
    for i in range(8):
        a(f"v_add_f32 {v(xf+i)}, {v(xf+i)}, {v(acc[i//4] + i%4)}")
    hp = V.alloc(4, 4, "hp")
    for i in range(4): a(f"v_cvt_pk_bf16_f32 {v(hp+i)}, {v(xf+2*i)}, {v(xf+2*i+1)}")
    sks = S.alloc(1, 1, "ksp")
    a(f"s_lshl_b32 {s(sks)}, {s(scb)}, 1"); a(f"s_and_b32 {s(st1)}, {s(sw)}, 1"); a(f"s_add_u32 {s(sks)}, {s(sks)}, {s(st1)}")
    a(f"s_lshl_b32 {s(st0)}, {s(srb)}, 2"); a(f"s_lshr_b32 {s(st1)}, {s(sw)}, 1"); a(f"s_add_u32 {s(st0)}, {s(st0)}, {s(st1)}")
    a(f"s_lshl_b32 {s(st2)}, {s(st0)}, 4"); a(f"s_add_u32 {s(st2)}, {s(st2)}, {s(sks)}"); a(f"s_lshl_b32 {s(st2)}, {s(st2)}, 10")
    a(f"s_add_u32 {s(st2)}, {s(st2)}, {WS_HF}")
    a(f"buffer_store_dwordx4 {v(hp,4)}, {v(vlin)}, {s(sws,4)}, {s(st2)} offen")
    st = V.alloc(2, 2, "st"); on = V.alloc(1, 1, "one")
    a(f"v_mov_b32 {v(on)}, {ONES}")
    a(f"v_dot2_f32_bf16 {v(st)}, {v(hp)}, {v(on)}, 0")
    a(f"v_dot2_f32_bf16 {v(st+1)}, {v(hp)}, {v(hp)}, 0")
    for i in range(1, 4):
        a(f"v_dot2_f32_bf16 {v(st)}, {v(hp+i)}, {v(on)}, {v(st)}")
        a(f"v_dot2_f32_bf16 {v(st+1)}, {v(hp+i)}, {v(hp+i)}, {v(st+1)}")
    a.nop(3)
    reduce_g(k, st, t1); reduce_g(k, st + 1, t1)
    a(f"v_lshlrev_b32 {v(t0)}, 7, {v(vl)}")
    a(f"s_lshl_b32 {s(st0)}, {s(st0)}, 11")
    a(f"s_lshl_b32 {s(st1)}, {s(sks)}, 3"); a(f"s_add_u32 {s(st0)}, {s(st0)}, {s(st1)}"); a(f"s_add_u32 {s(st0)}, {s(st0)}, {WS_HST}")
    a("s_mov_b64 exec, 0xffff")
    a(f"buffer_store_dwordx2 {v(st,2)}, {v(t0)}, {s(sws,4)}, {s(st0)} offen")
    a("s_mov_b64 exec, -1")
    if STAMPS: a("s_waitcnt vmcnt(0)")
    k.stamp(); k.stamp_rt()
    k.dump_stamps(P["ws"], 2)
    k.finish()
    return k


GK1 = 2.0 * math.sqrt(2.0 / math.pi) * math.log2(math.e)
def gelu_block(k, regs, tmp, vc0):
    a = k.a
    for r, t in zip(regs, tmp): a(f"v_mul_f32 {v(t)}, {v(r)}, {v(r)}")
    for r, t in zip(regs, tmp): a(f"v_fmamk_f32 {v(t)}, {v(t)}, {hexf(-GK1*0.044715)}, {v(vc0)}")
    for r, t in zip(regs, tmp): a(f"v_mul_f32 {v(t)}, {v(t)}, {v(r)}")
    for r, t in zip(regs, tmp): a(f"v_exp_f32 {v(t)}, {v(t)}")
    for r, t in zip(regs, tmp): a(f"v_add_f32 {v(t)}, 1.0, {v(t)}")
    for r, t in zip(regs, tmp): a(f"v_rcp_f32 {v(t)}, {v(t)}")
    a("s_nop 0")
    for r, t in zip(regs, tmp): a(f"v_mul_f32 {v(r)}, {v(r)}, {v(t)}")

def gen_K4():
    LPART = 0; LSTAT = LPART + 7*512; LTR = LSTAT + 512; LH = LTR + 7*2048
    k = K("p4_kernel", 256, lds=LH + 65536)
    a = k.a; V = k.V; S = k.S
    P = k.prologue(["ws"])
    k.stamp_rt(); k.stamp()
    sw, vl = k.sw, k.vl
    srb = S.alloc(1, 1, "rb"); sfb = S.alloc(1, 1, "fb")
    wg_rb_hg(k, srb, sfb)
    sws = k.srd(P["ws"], WS_END, "srd_ws")
    st0 = S.alloc(1); st1 = S.alloc(1); st2 = S.alloc(1); S.mark(98, 2, "tmp")
    vlin = V.alloc(1, 1, "lin16"); t0 = V.alloc(1); t1 = V.alloc(1)
    a(f"v_lshlrev_b32 {v(vlin)}, 4, {v(vl)}")
    a(f"s_lshl_b32 {s(st2)}, {s(sw)}, 13")
    a(f"s_lshl_b32 {s(st0)}, {s(srb)}, 16"); a(f"s_add_u32 {s(st0)}, {s(st0)}, {s(st2)}"); a(f"s_add_u32 {s(st0)}, {s(st0)}, {WS_HF}")
    for i in range(8):
        a(f"s_add_u32 m0, {s(st2)}, {LH + i*1024}")
        a(f"s_add_u32 s98, {s(st0)}, {i*1024}")
        a(f"buffer_load_dwordx4 {v(vlin)}, {s(sws,4)}, s98 offen lds")
    a(f"s_cmp_eq_u32 {s(sw)}, 7")
    a("s_cbranch_scc1 p4_w7")
    W2 = V.alloc(64, 4, "W2"); W1 = V.alloc(64, 4, "W1")
    a(f"s_mul_i32 {s(st0)}, {s(sfb)}, 7"); a(f"s_add_u32 {s(st0)}, {s(st0)}, {s(sw)}")
    sft = S.alloc(1, 1, "ft_global")
    a(f"s_mov_b32 {s(sft)}, {s(st0)}")
    a(f"s_lshl_b32 {s(st0)}, {s(st0)}, 14"); a(f"s_add_u32 {s(st0)}, {s(st0)}, {WS_WINF}")
    a(f"s_add_u32 {s(st1)}, {s(st0)}, {56*16384}")
    for ks in range(16):
        if ks % 4 == 0 and ks: a(f"s_add_u32 {s(st1)}, {s(st1)}, 4096")
        a(f"buffer_load_dwordx4 {v(W2+4*ks,4)}, {v(vlin)}, {s(sws,4)}, {s(st1)} offen offset:{(ks%4)*1024}")
    hs = V.alloc(32, 4, "hstat")
    a(f"v_and_b32 {v(t0)}, 15, {v(vl)}"); a(f"v_lshlrev_b32 {v(t0)}, 7, {v(t0)}")
    a(f"v_lshrrev_b32 {v(t1)}, 4, {v(vl)}"); a(f"v_lshl_add_u32 {v(t0)}, {v(t1)}, 5, {v(t0)}")
    a(f"s_lshl_b32 {s(st1)}, {s(srb)}, 13"); a(f"s_add_u32 {s(st1)}, {s(st1)}, {WS_HST}")
    for tt in range(4):
        if tt == 2: a(f"s_add_u32 {s(st1)}, {s(st1)}, 4096")
        a(f"buffer_load_dwordx4 {v(hs+8*tt,4)}, {v(t0)}, {s(sws,4)}, {s(st1)} offen offset:{(tt%2)*2048}")
        a(f"buffer_load_dwordx4 {v(hs+8*tt+4,4)}, {v(t0)}, {s(sws,4)}, {s(st1)} offen offset:{(tt%2)*2048+16}")
    for ks in range(16):
        if ks % 4 == 0 and ks: a(f"s_add_u32 {s(st0)}, {s(st0)}, 4096")
        a(f"buffer_load_dwordx4 {v(W1+4*ks,4)}, {v(vlin)}, {s(sws,4)}, {s(st0)} offen offset:{(ks%4)*1024}")
    ones = V.alloc(4, 4, "ones"); cs2 = V.alloc(4, 4, "cs2"); cs1 = V.alloc(4, 4, "cs1")
    acc = V.alloc(16, 4, "acc"); z2 = V.alloc(16, 4, "z2keep")
    for i in range(4): a(f"v_mov_b32 {v(ones+i)}, {ONES}")
    vc0 = V.alloc(1, 1, "gc0"); a(f"v_mov_b32 {v(vc0)}, {hexf(-GK1)}")
    vb = V.alloc(1, 1, "haddr"); a(f"v_add_u32 {v(vb)}, {LH}, {v(vlin)}")
    a("s_waitcnt vmcnt(24)")
    for ks in range(16):
        a(f"v_mfma_f32_16x16x32_bf16 {v(cs2,4)}, {v(W2+4*ks,4)}, {v(ones,4)}, {v(cs2,4) if ks else '0'}")
    a("s_waitcnt vmcnt(16)")
    mean = V.alloc(4, 4, "mean"); rstd = V.alloc(4, 4, "rstd")
    for tt in range(4):
        b = hs + 8*tt
        a(f"v_add_f32 {v(b)}, {v(b)}, {v(b+2)}"); a(f"v_add_f32 {v(b+1)}, {v(b+1)}, {v(b+3)}")
        a(f"v_add_f32 {v(b+4)}, {v(b+4)}, {v(b+6)}"); a(f"v_add_f32 {v(b+5)}, {v(b+5)}, {v(b+7)}")
        a(f"v_add_f32 {v(b)}, {v(b)}, {v(b+4)}"); a(f"v_add_f32 {v(b+1)}, {v(b+1)}, {v(b+5)}")
        reduce_g(k, b, t1); reduce_g(k, b + 1, t1)
        a(f"v_mul_f32 {v(mean+tt)}, {hexf(1.0/512)}, {v(b)}")
        a(f"v_mul_f32 {v(b+1)}, {hexf(1.0/512)}, {v(b+1)}")
        a(f"v_fma_f32 {v(b+1)}, -{v(mean+tt)}, {v(mean+tt)}, {v(b+1)}")
        a(f"v_max_f32 {v(b+1)}, 0, {v(b+1)}")
        a(f"v_add_f32 {v(b+1)}, {hexf(1e-5)}, {v(b+1)}")
        a(f"v_rsq_f32 {v(rstd+tt)}, {v(b+1)}")
    V.free(hs, 32)
    k.stamp()
    a("s_barrier")
    k.stamp()
    HB = [V.alloc(16, 4, "hb0"), V.alloc(16, 4, "hb1")]
    def gemm(W, cs):
        def issue(ks):
            for tt in range(4):
                a(f"ds_read_b128 {v(HB[ks%2]+4*tt,4)}, {v(vb)} offset:{tt*16384 + ks*1024}")
        issue(0)
        for ks in range(16):
            if ks + 1 < 16:
                issue(ks + 1); a("s_waitcnt lgkmcnt(4)")
            else: a("s_waitcnt lgkmcnt(0)")
            for tt in range(4):
                a(f"v_mfma_f32_16x16x32_bf16 {v(acc+4*tt,4)}, {v(W+4*ks,4)}, {v(HB[ks%2]+4*tt,4)}, {v(acc+4*tt,4) if ks else '0'}")
        a.nop(8)
        for tt in range(4):
            for r in range(4):
                x = acc + 4*tt + r
                a(f"v_fma_f32 {v(x)}, -{v(mean+tt)}, {v(cs+r)}, {v(x)}")
                a(f"v_mul_f32 {v(x)}, {v(rstd+tt)}, {v(x)}")
        gelu_block(k, [acc + i for i in range(16)], [HB[0] + i for i in range(16)], vc0)
    gemm(W2, cs2)
    k.stamp()
    for i in range(16): a(f"v_mov_b32 {v(z2+i)}, {v(acc+i)}")
    ps = V.alloc(8, 2, "ps")
    for tt in range(4):
        x = acc + 4*tt
        a(f"v_add_f32 {v(ps+2*tt)}, {v(x)}, {v(x+1)}"); a(f"v_mul_f32 {v(ps+2*tt+1)}, {v(x)}, {v(x)}")
        a(f"v_add_f32 {v(ps+2*tt)}, {v(ps+2*tt)}, {v(x+2)}"); a(f"v_fmac_f32 {v(ps+2*tt+1)}, {v(x+1)}, {v(x+1)}")
        a(f"v_add_f32 {v(ps+2*tt)}, {v(ps+2*tt)}, {v(x+3)}"); a(f"v_fmac_f32 {v(ps+2*tt+1)}, {v(x+2)}, {v(x+2)}")
        a(f"v_fmac_f32 {v(ps+2*tt+1)}, {v(x+3)}, {v(x+3)}")
    for i in range(8): reduce_g(k, ps + i, t1)
    a(f"v_lshlrev_b32 {v(t0)}, 3, {v(vl)}")
    a(f"s_lshl_b32 {s(st0)}, {s(sw)}, 9"); a(f"s_add_u32 {s(st0)}, {s(st0)}, {LPART}")
    a(f"v_add_u32 {v(t0)}, {s(st0)}, {v(t0)}")
    a("s_mov_b64 exec, 0xffff")
    for tt in range(4): a(f"ds_write_b64 {v(t0)}, {v(ps+2*tt,2)} offset:{tt*128}")
    a("s_mov_b64 exec, -1")
    a("s_waitcnt lgkmcnt(0)")
    a("s_barrier")
    a("s_waitcnt vmcnt(0)")
    for ks in range(16):
        a(f"v_mfma_f32_16x16x32_bf16 {v(cs1,4)}, {v(W1+4*ks,4)}, {v(ones,4)}, {v(cs1,4) if ks else '0'}")
    gemm(W1, cs1)
    zp = V.alloc(8, 4, "zp")
    for tt in range(4):
        a(f"v_cvt_pk_bf16_f32 {v(zp+2*tt)}, {v(acc+4*tt)}, {v(acc+4*tt+1)}")
        a(f"v_cvt_pk_bf16_f32 {v(zp+2*tt+1)}, {v(acc+4*tt+2)}, {v(acc+4*tt+3)}")
    a(f"v_lshlrev_b32 {v(t0)}, 3, {v(vl)}")
    a(f"s_mul_i32 {s(st0)}, {s(srb)}, {4*56}"); a(f"s_add_u32 {s(st0)}, {s(st0)}, {s(sft)}"); a(f"s_lshl_b32 {s(st0)}, {s(st0)}, 9")
    a(f"s_add_u32 {s(st0)}, {s(st0)}, {WS_Z1}")
    for tt in range(4):
        a(f"buffer_store_dwordx2 {v(zp+2*tt,2)}, {v(t0)}, {s(sws,4)}, {s(st0)} offen")
        if tt < 3: a(f"s_add_u32 {s(st0)}, {s(st0)}, {56*512}")
    k.stamp()
    a("s_barrier")
    k.stamp()
    a(f"v_and_b32 {v(t0)}, 15, {v(vl)}"); a(f"v_lshlrev_b32 {v(t0)}, 3, {v(t0)}")
    for tt in range(4): a(f"ds_read_b64 {v(ps+2*tt,2)}, {v(t0)} offset:{LSTAT + tt*128}")
    a("s_waitcnt lgkmcnt(0)")
    for tt in range(4):
        for r in range(4):
            x = z2 + 4*tt + r
            a(f"v_sub_f32 {v(x)}, {v(x)}, {v(ps+2*tt)}")
            a(f"v_mul_f32 {v(x)}, {v(ps+2*tt+1)}, {v(x)}")
    for tt in range(4):
        a(f"v_cvt_pk_bf16_f32 {v(zp+2*tt)}, {v(z2+4*tt)}, {v(z2+4*tt+1)}")
        a(f"v_cvt_pk_bf16_f32 {v(zp+2*tt+1)}, {v(z2+4*tt+2)}, {v(z2+4*tt+3)}")
    a(f"s_lshl_b32 {s(st0)}, {s(sw)}, 11"); a(f"s_add_u32 {s(st0)}, {s(st0)}, {LTR}")
    a(f"v_and_b32 {v(t0)}, 15, {v(vl)}"); a(f"v_lshlrev_b32 {v(t0)}, 5, {v(t0)}")
    a(f"v_lshrrev_b32 {v(t1)}, 4, {v(vl)}"); a(f"v_lshl_add_u32 {v(t0)}, {v(t1)}, 3, {v(t0)}")
    a(f"v_add_u32 {v(t0)}, {s(st0)}, {v(t0)}")
    for tt in range(4): a(f"ds_write_b64 {v(t0)}, {v(zp+2*tt,2)} offset:{tt*512}")
    a(f"v_lshrrev_b32 {v(t0)}, 4, {v(vl)}"); a(f"v_lshlrev_b32 {v(t0)}, 3, {v(t0)}")
    a(f"v_lshrrev_b32 {v(t1)}, 2, {v(vl)}"); a(f"v_and_b32 {v(t1)}, 3, {v(t1)}"); a(f"v_add_u32 {v(t0)}, {v(t0)}, {v(t1)}")
    a(f"v_lshlrev_b32 {v(t0)}, 5, {v(t0)}")
    a(f"v_and_b32 {v(t1)}, 3, {v(vl)}"); a(f"v_lshl_add_u32 {v(t0)}, {v(t1)}, 3, {v(t0)}")
    a(f"v_add_u32 {v(t0)}, {s(st0)}, {v(t0)}")
    a("s_waitcnt lgkmcnt(0)")
    fr = HB[0]
    for ksl in range(2):
        a(f"ds_read_b64_tr_b16 {v(fr+4*ksl,2)}, {v(t0)} offset:{ksl*1024}")
        a(f"ds_read_b64_tr_b16 {v(fr+4*ksl+2,2)}, {v(t0)} offset:{ksl*1024+128}")
    a("s_waitcnt lgkmcnt(0)")
    a(f"s_lshl_b32 {s(st0)}, {s(sfb)}, 6"); a(f"s_lshl_b32 {s(st1)}, {s(srb)}, 1"); a(f"s_add_u32 {s(st0)}, {s(st0)}, {s(st1)}")
    a(f"s_mul_i32 {s(st0)}, {s(st0)}, 7"); a(f"s_add_u32 {s(st0)}, {s(st0)}, {s(sw)}"); a(f"s_lshl_b32 {s(st0)}, {s(st0)}, 10")
    a(f"s_add_u32 {s(st0)}, {s(st0)}, {WS_Z2}")
    a(f"buffer_store_dwordx4 {v(fr,4)}, {v(vlin)}, {s(sws,4)}, {s(st0)} offen")
    a(f"s_add_u32 {s(st0)}, {s(st0)}, {7*1024}")
    a(f"buffer_store_dwordx4 {v(fr+4,4)}, {v(vlin)}, {s(sws,4)}, {s(st0)} offen")
    a("s_branch p4_fin")
    a.label("p4_w7")
    a("s_waitcnt vmcnt(0)")
    a("s_barrier")
    a("s_barrier")
    q = V.alloc(16, 2, "w7q")
    a(f"v_lshlrev_b32 {v(t0)}, 3, {v(vl)}")
    for w in range(7): a(f"ds_read_b64 {v(q+2*w,2)}, {v(t0)} offset:{LPART + w*512}")
    a("s_waitcnt lgkmcnt(0)")
    for w in range(1, 7):
        a(f"v_add_f32 {v(q)}, {v(q)}, {v(q+2*w)}"); a(f"v_add_f32 {v(q+1)}, {v(q+1)}, {v(q+2*w+1)}")
    a(f"v_or_b32 {v(q+1)}, 0x80000000, {v(q+1)}")
    a(f"s_lshl_b32 {s(st0)}, {s(srb)}, 12"); a(f"s_add_u32 {s(st0)}, {s(st0)}, {WS_Z2ST}")
    a(f"s_lshl_b32 {s(st1)}, {s(sfb)}, 9"); a(f"s_add_u32 {s(st1)}, {s(st1)}, {s(st0)}")
    a(f"buffer_store_dwordx2 {v(q,2)}, {v(t0)}, {s(sws,4)}, {s(st1)} offen sc0 sc1")
    a(f"s_mov_b32 {s(st2)}, 0")
    a.label("p4_poll")
    for f in range(8):
        a(f"buffer_load_dwordx2 {v(q+2*f,2)}, {v(t0)}, {s(sws,4)}, {s(st0)} offen offset:{f*512} sc0 sc1")
    a("s_waitcnt vmcnt(0)")
    a(f"v_and_b32 {v(t1)}, {v(q+1)}, {v(q+3)}")
    for f in range(2, 8): a(f"v_and_b32 {v(t1)}, {v(t1)}, {v(q+2*f+1)}")
    a(f"v_cmp_gt_i32 vcc, 0, {v(t1)}")
    a(f"s_add_u32 {s(st2)}, {s(st2)}, 1")
    a("s_cmp_eq_u64 vcc, -1")
    a("s_cbranch_scc1 p4_pollok")
    a(f"s_cmp_lt_u32 {s(st2)}, 200000")
    a("s_cbranch_scc0 p4_pollok")
    a("s_sleep 1")
    a("s_branch p4_poll")
    a.label("p4_pollok")
    for f in range(1, 8):
        a(f"v_add_f32 {v(q)}, {v(q)}, {v(q+2*f)}")
    a(f"v_and_b32 {v(q+1)}, 0x7fffffff, {v(q+1)}")
    for f in range(1, 8):
        a(f"v_and_b32 {v(q+2*f+1)}, 0x7fffffff, {v(q+2*f+1)}")
        a(f"v_add_f32 {v(q+1)}, {v(q+1)}, {v(q+2*f+1)}")
    a(f"v_mul_f32 {v(q)}, {hexf(1.0/896)}, {v(q)}")
    a(f"v_mul_f32 {v(q+1)}, {hexf(1.0/896)}, {v(q+1)}")
    a(f"v_fma_f32 {v(q+1)}, -{v(q)}, {v(q)}, {v(q+1)}")
    a(f"v_max_f32 {v(q+1)}, 0, {v(q+1)}")
    a(f"v_add_f32 {v(q+1)}, {hexf(1e-5)}, {v(q+1)}")
    a(f"v_rsq_f32 {v(q+1)}, {v(q+1)}")
    a("s_nop 0")
    a(f"ds_write_b64 {v(t0)}, {v(q,2)} offset:{LSTAT}")
    a("s_waitcnt lgkmcnt(0)")
    a("s_barrier")
    a.label("p4_fin")
    if STAMPS: a("s_waitcnt vmcnt(0)")
    k.stamp(); k.stamp_rt()
    k.dump_stamps(P["ws"], 3)
    k.finish()
    return k


def gen_K5():
    STG = 45056
    k = K("p5_kernel", 256, lds=3 * STG)
    a = k.a; V = k.V; S = k.S
    P = k.prologue(["wsp", "bsp", "ws"])
    k.stamp_rt(); k.stamp()
    sw, vl = k.sw, k.vl
    stb = S.alloc(1, 1, "tb"); sfb = S.alloc(1, 1, "fb")
    st0 = S.alloc(1); st1 = S.alloc(1); st2 = S.alloc(1); S.mark(98, 2, "tmp")
    a(f"s_and_b32 {s(st0)}, s2, 1"); a(f"s_lshl_b32 {s(st0)}, {s(st0)}, 2")
    a(f"s_lshr_b32 {s(st1)}, s2, 3"); a(f"s_and_b32 {s(st1)}, {s(st1)}, 3"); a(f"s_add_u32 {s(sfb)}, {s(st0)}, {s(st1)}")
    a(f"s_lshr_b32 {s(st0)}, s2, 1"); a(f"s_and_b32 {s(st0)}, {s(st0)}, 3"); a(f"s_lshl_b32 {s(st0)}, {s(st0)}, 3")
    a(f"s_lshr_b32 {s(st1)}, s2, 5"); a(f"s_add_u32 {s(stb)}, {s(st0)}, {s(st1)}")
    sws = k.srd(P["ws"], WS_END, "srd_ws"); swsp = k.srd(P["wsp"], 2048 * 2048 * 2, "srd_wsp"); sbsp = k.srd(P["bsp"], 2048 * 2, "srd_bsp")
    vlin = V.alloc(1, 1, "lin16"); t0 = V.alloc(1); t1 = V.alloc(1)
    a(f"v_lshlrev_b32 {v(vlin)}, 4, {v(vl)}")
    sth = S.alloc(1, 1, "th"); skq = S.alloc(1, 1, "kq")
    a(f"s_and_b32 {s(sth)}, {s(sw)}, 1"); a(f"s_lshr_b32 {s(skq)}, {s(sw)}, 1")
    vB = V.alloc(2, 2, "vB")
    a(f"v_lshrrev_b32 {v(t0)}, 4, {v(vl)}"); a(f"v_and_b32 {v(t1)}, 15, {v(vl)}"); a(f"v_xor_b32 {v(t1)}, {v(t1)}, {v(t0)}")
    a(f"v_lshlrev_b32 {v(t1)}, 4, {v(t1)}"); a(f"v_lshl_add_u32 {v(t0)}, {v(t0)}, 12, {v(t1)}")
    a(f"s_lshl_b32 {s(st0)}, {s(sw)}, 1"); a(f"s_and_b32 {s(st0)}, {s(st0)}, 3"); a(f"s_lshl_b32 {s(st0)}, {s(st0)}, 6")
    a(f"v_xor_b32 {v(vB)}, {s(st0)}, {v(t0)}")
    a(f"v_xor_b32 {v(vB+1)}, 64, {v(vB)}")
    sA = S.alloc(1, 1, "srcA"); sB = S.alloc(1, 1, "srcB"); sA4 = S.alloc(1, 1, "a4")
    a(f"s_mul_i32 {s(sA)}, {s(sfb)}, {64*7*1024}"); a(f"s_add_u32 {s(sA)}, {s(sA)}, {WS_Z2}")
    a(f"s_lshl_b32 {s(st0)}, {s(sw)}, 10"); a(f"s_add_u32 {s(sA)}, {s(sA)}, {s(st0)}")
    a(f"s_mov_b32 {s(sA4)}, {16*1024}"); a(f"s_cmp_lt_u32 {s(sw)}, 4"); a(f"s_cselect_b32 {s(sA4)}, {24*1024}, {s(sA4)}")
    a(f"s_lshl_b32 {s(sB)}, {s(stb)}, 18")
    a(f"s_lshl_b32 {s(st0)}, {s(sw)}, 15"); a(f"s_add_u32 {s(sB)}, {s(sB)}, {s(st0)}")
    sslot_w = S.alloc(1, 1, "slot_w"); sslot_r = S.alloc(1, 1, "slot_r"); sw10 = S.alloc(1, 1, "w10"); sw11 = S.alloc(1, 1, "w11")
    a(f"s_lshl_b32 {s(sw10)}, {s(sw)}, 10"); a(f"s_lshl_b32 {s(sw11)}, {s(sw)}, 11"); a(f"s_add_u32 {s(sw11)}, {s(sw11)}, 28672")
    def issue_stage():
        for i in range(3):
            a(f"s_add_u32 {s(st0)}, {s(sslot_w)}, {s(sw10)}")
            a(f"s_add_u32 m0, {s(st0)}, {i*8192}")
            a(f"s_add_u32 s98, {s(sA)}, {i*8192}")
            a(f"buffer_load_dwordx4 {v(vlin)}, {s(sws,4)}, s98 offen lds")
        a(f"s_add_u32 m0, {s(st0)}, {s(sA4)}")
        a(f"s_add_u32 s98, {s(sA)}, {s(sA4)}")
        a(f"buffer_load_dwordx4 {v(vlin)}, {s(sws,4)}, s98 offen lds")
        a(f"s_add_u32 m0, {s(sslot_w)}, {s(sw11)}")
        a("s_nop 0")
        a(f"buffer_load_dwordx4 {v(vB)}, {s(swsp,4)}, {s(sB)} offen lds")
        a(f"s_add_u32 m0, m0, 1024")
        a(f"s_add_u32 s98, {s(sB)}, {4*4096}")
        a(f"buffer_load_dwordx4 {v(vB+1)}, {s(swsp,4)}, s98 offen lds")
        a(f"s_add_u32 {s(sA)}, {s(sA)}, {28*1024}")
        a(f"s_add_u32 {s(sB)}, {s(sB)}, 256")
        a(f"s_add_u32 {s(sslot_w)}, {s(sslot_w)}, {STG}")
        a(f"s_cmp_ge_u32 {s(sslot_w)}, {3*STG}")
        a(f"s_cselect_b32 {s(sslot_w)}, 0, {s(sslot_w)}")
    a(f"s_mov_b32 {s(sslot_w)}, 0"); a(f"s_mov_b32 {s(sslot_r)}, 0")
    z1 = V.alloc(8, 4, "z1"); bb = V.alloc(2, 2, "bias")
    sft0 = S.alloc(1, 1, "ft0"); se1 = S.alloc(1, 1, "e1")
    a(f"s_lshl_b32 {s(sft0)}, {s(skq)}, 1")
    a(f"s_cmp_lt_u32 {s(skq)}, 3"); a(f"s_cselect_b32 {s(se1)}, 1, 0")
    sty = S.alloc(1, 1, "tileoff")
    a(f"s_lshl_b32 {s(sty)}, {s(stb)}, 2"); a(f"s_lshl_b32 {s(st0)}, {s(sth)}, 1"); a(f"s_add_u32 {s(sty)}, {s(sty)}, {s(st0)}")
    a(f"s_mul_i32 {s(sty)}, {s(sty)}, 56"); a(f"s_mul_i32 {s(st0)}, {s(sfb)}, 7"); a(f"s_add_u32 {s(sty)}, {s(sty)}, {s(st0)}")
    a(f"s_add_u32 {s(sty)}, {s(sty)}, {s(sft0)}"); a(f"s_lshl_b32 {s(sty)}, {s(sty)}, 9")
    vl8 = V.alloc(1, 1, "lane8"); a(f"v_lshlrev_b32 {v(vl8)}, 3, {v(vl)}")
    se9 = S.alloc(1, 1, "e9"); a(f"s_lshl_b32 {s(se9)}, {s(se1)}, 9")
    for ttp in range(2):
        a(f"s_add_u32 {s(st0)}, {s(sty)}, {WS_Z1 + ttp*56*512}")
        a(f"buffer_load_dwordx2 {v(z1+4*ttp,2)}, {v(vl8)}, {s(sws,4)}, {s(st0)} offen")
        a(f"s_add_u32 {s(st0)}, {s(st0)}, {s(se9)}")
        a(f"buffer_load_dwordx2 {v(z1+4*ttp+2,2)}, {v(vl8)}, {s(sws,4)}, {s(st0)} offen")
    a(f"v_and_b32 {v(t0)}, 15, {v(vl)}"); a(f"v_lshlrev_b32 {v(t0)}, 1, {v(t0)}")
    a(f"s_lshl_b32 {s(st0)}, {s(stb)}, 7"); a(f"s_lshl_b32 {s(st1)}, {s(sth)}, 6"); a(f"s_add_u32 {s(st0)}, {s(st0)}, {s(st1)}")
    a(f"buffer_load_ushort {v(bb)}, {v(t0)}, {s(sbsp,4)}, {s(st0)} offen")
    a(f"buffer_load_ushort {v(bb+1)}, {v(t0)}, {s(sbsp,4)}, {s(st0)} offen offset:32")
    issue_stage(); issue_stage()
    vA = V.alloc(1, 1, "vAr"); vBr = V.alloc(1, 1, "vBr"); vA0 = V.alloc(1, 1); vB0 = V.alloc(1, 1)
    a(f"s_mul_i32 {s(st0)}, {s(skq)}, 7168"); a(f"v_add_u32 {v(vA0)}, {s(st0)}, {v(vlin)}")
    a(f"v_lshrrev_b32 {v(t0)}, 4, {v(vl)}"); a(f"s_lshl_b32 {s(st0)}, {s(skq)}, 2"); a(f"v_add_u32 {v(t0)}, {s(st0)}, {v(t0)}")
    a(f"v_and_b32 {v(t1)}, 15, {v(vl)}"); a(f"v_xor_b32 {v(t0)}, {v(t0)}, {v(t1)}"); a(f"v_lshlrev_b32 {v(t0)}, 4, {v(t0)}")
    a(f"v_lshl_add_u32 {v(vB0)}, {v(t1)}, 8, {v(t0)}")
    a(f"s_lshl_b32 {s(st0)}, {s(sth)}, 13"); a(f"s_add_u32 {s(st0)}, {s(st0)}, 28672"); a(f"v_add_u32 {v(vB0)}, {s(st0)}, {v(vB0)}")
    acc = V.alloc(56, 4, "acc")
    for i in range(56): a(f"v_mov_b32 {v(acc+i)}, 0")
    AF = V.alloc(28, 4, "AF"); BF = V.alloc(8, 4, "BF")
    sit = S.alloc(1, 1, "it"); a(f"s_mov_b32 {s(sit)}, 0")
    k.stamp()
    a.label("p5_loop")
    a("s_waitcnt vmcnt(6)")
    a("s_barrier")
    issue_stage()
    a(f"v_add_u32 {v(vA)}, {s(sslot_r)}, {v(vA0)}")
    a(f"v_add_u32 {v(vBr)}, {s(sslot_r)}, {v(vB0)}")
    a(f"ds_read_b128 {v(BF,4)}, {v(vBr)}")
    a(f"ds_read_b128 {v(BF+4,4)}, {v(vBr)} offset:4096")
    for ft in range(7): a(f"ds_read_b128 {v(AF+4*ft,4)}, {v(vA)} offset:{ft*1024}")
    a(f"s_add_u32 {s(sslot_r)}, {s(sslot_r)}, {STG}")
    a(f"s_cmp_ge_u32 {s(sslot_r)}, {3*STG}")
    a(f"s_cselect_b32 {s(sslot_r)}, 0, {s(sslot_r)}")
    for ft in range(7):
        a(f"s_waitcnt lgkmcnt({6-ft})")
        for ttp in range(2):
            x = acc + (ttp*7 + ft)*4
            a(f"v_mfma_f32_16x16x32_bf16 {v(x,4)}, {v(AF+4*ft,4)}, {v(BF+4*ttp,4)}, {v(x,4)}")
    a(f"s_add_u32 {s(sit)}, {s(sit)}, 1")
    a(f"s_cmp_lt_u32 {s(sit)}, 16")
    a("s_cbranch_scc1 p5_loop")
    k.stamp()
    a("s_waitcnt vmcnt(0)")
    a("s_barrier")
    a(f"s_lshl_b32 {s(st0)}, {s(sth)}, 2"); a(f"s_add_u32 {s(st0)}, {s(st0)}, {s(skq)}"); a(f"s_mul_i32 {s(st0)}, {s(st0)}, {14*1024}")
    a(f"v_add_u32 {v(t0)}, {s(st0)}, {v(vlin)}")
    a.nop(4)
    for i in range(14): a(f"ds_write_b128 {v(t0)}, {v(acc+4*i,4)} offset:{i*1024}")
    a(f"s_mul_i32 {s(st0)}, {s(sth)}, {4*14*1024}"); a(f"s_lshl_b32 {s(st1)}, {s(sft0)}, 10"); a(f"s_add_u32 {s(st0)}, {s(st0)}, {s(st1)}")
    a(f"v_add_u32 {v(t0)}, {s(st0)}, {v(vlin)}")
    a(f"s_lshl_b32 {s(st1)}, {s(se1)}, 10"); a(f"v_add_u32 {v(t1)}, {s(st1)}, {v(t0)}")
    a("s_waitcnt lgkmcnt(0)")
    a("s_barrier")
    R = acc
    RR = V.alloc(64, 4, "RR")
    for src in range(4):
        for ttp in range(2):
            for e in range(2):
                a(f"ds_read_b128 {v(RR + ((src*2+ttp)*2+e)*4,4)}, {v(t0 if e == 0 else t1)} offset:{src*14336 + ttp*7168}")
    a("s_waitcnt lgkmcnt(0)")
    for src in range(1, 4):
        for i in range(16): a(f"v_add_f32 {v(RR+i)}, {v(RR+i)}, {v(RR+src*16+i)}")
    a("s_waitcnt vmcnt(0)")
    a(f"v_lshlrev_b32 {v(bb)}, 16, {v(bb)}"); a(f"v_lshlrev_b32 {v(bb+1)}, 16, {v(bb+1)}")
    zf = acc
    for ttp in range(2):
        for e in range(2):
            x = RR + (ttp*2+e)*4; z = z1 + 4*ttp + 2*e
            unpack_lo(a, zf, z); unpack_hi(a, zf+1, z); unpack_lo(a, zf+2, z+1); unpack_hi(a, zf+3, z+1)
            for r in range(4):
                a(f"v_add_f32 {v(x+r)}, {v(x+r)}, {v(bb+ttp)}")
                a(f"v_mul_f32 {v(x+r)}, {v(x+r)}, {v(zf+r)}")
            a(f"v_cvt_pk_bf16_f32 {v(z)}, {v(x)}, {v(x+1)}")
            a(f"v_cvt_pk_bf16_f32 {v(z+1)}, {v(x+2)}, {v(x+3)}")
    for ttp in range(2):
        a(f"s_add_u32 {s(st0)}, {s(sty)}, {WS_Y + ttp*56*512}")
        a(f"buffer_store_dwordx2 {v(z1+4*ttp,2)}, {v(vl8)}, {s(sws,4)}, {s(st0)} offen")
        a(f"s_add_u32 {s(st0)}, {s(st0)}, {s(se9)}")
        a(f"buffer_store_dwordx2 {v(z1+4*ttp+2,2)}, {v(vl8)}, {s(sws,4)}, {s(st0)} offen")
    if STAMPS: a("s_waitcnt vmcnt(0)")
    k.stamp(); k.stamp_rt()
    k.dump_stamps(P["ws"], 4)
    k.finish()
    return k

def gen_K6():
    LEX = 114688
    k = K("p6_kernel", 256, lds=LEX + 8 * 2048)
    a = k.a; V = k.V; S = k.S
    P = k.prologue(["out", "ws"])
    k.stamp_rt(); k.stamp()
    sw, vl = k.sw, k.vl
    srb = S.alloc(1, 1, "rb"); scb = S.alloc(1, 1, "cb")
    wg_rb_hg(k, srb, scb)
    sws = k.srd(P["ws"], WS_END, "srd_ws"); sout = k.srd(P["out"], S_ * D * 2, "srd_out")
    st0 = S.alloc(1); st1 = S.alloc(1); st2 = S.alloc(1); S.mark(98, 2, "tmp")
    vlin = V.alloc(1, 1, "lin16"); t0 = V.alloc(1); t1 = V.alloc(1)
    a(f"v_lshlrev_b32 {v(vlin)}, 4, {v(vl)}")
    sjp = S.alloc(1, 1, "jp"); stp = S.alloc(1, 1, "tp"); skh = S.alloc(1, 1, "kh")
    a(f"s_and_b32 {s(sjp)}, {s(sw)}, 1"); a(f"s_lshr_b32 {s(stp)}, {s(sw)}, 1"); a(f"s_and_b32 {s(stp)}, {s(stp)}, 1"); a(f"s_lshr_b32 {s(skh)}, {s(sw)}, 2")
    a(f"s_mul_i32 {s(st2)}, {s(sw)}, {14*1024}")
    a(f"s_mul_i32 {s(st0)}, {s(srb)}, 114688"); a(f"s_add_u32 {s(st0)}, {s(st0)}, {s(st2)}"); a(f"s_add_u32 {s(st0)}, {s(st0)}, {WS_Y}")
    for i in range(14):
        a(f"s_add_u32 m0, {s(st2)}, {i*1024}")
        a(f"s_add_u32 s98, {s(st0)}, {i*1024}")
        a(f"buffer_load_dwordx4 {v(vlin)}, {s(sws,4)}, s98 offen lds")
    W = [V.alloc(56, 4, "W0"), V.alloc(56, 4, "W1")]
    a(f"s_lshl_b32 {s(st0)}, {s(scb)}, 2"); a(f"s_lshl_b32 {s(st1)}, {s(sjp)}, 1"); a(f"s_add_u32 {s(st0)}, {s(st0)}, {s(st1)}")
    a(f"s_mul_i32 {s(st0)}, {s(st0)}, 28"); a(f"s_mul_i32 {s(st1)}, {s(skh)}, 14"); a(f"s_add_u32 {s(st0)}, {s(st0)}, {s(st1)}")
    a(f"s_lshl_b32 {s(st0)}, {s(st0)}, 10"); a(f"s_add_u32 {s(st0)}, {s(st0)}, {WS_WOUTF}")
    for e in range(2):
        a(f"s_add_u32 {s(st1)}, {s(st0)}, {e*28*1024}")
        for i in range(14):
            if i % 4 == 0 and i: a(f"s_add_u32 {s(st1)}, {s(st1)}, 4096")
            a(f"buffer_load_dwordx4 {v(W[e]+4*i,4)}, {v(vlin)}, {s(sws,4)}, {s(st1)} offen offset:{(i%4)*1024}")
    hr = V.alloc(4, 4, "hres"); stt = S.alloc(1, 1, "tt")
    a(f"s_lshl_b32 {s(stt)}, {s(stp)}, 1"); a(f"s_add_u32 {s(stt)}, {s(stt)}, {s(skh)}")
    a(f"s_lshl_b32 {s(st0)}, {s(srb)}, 2"); a(f"s_add_u32 {s(st0)}, {s(st0)}, {s(stt)}"); a(f"s_lshl_b32 {s(st0)}, {s(st0)}, 4")
    a(f"s_lshl_b32 {s(st1)}, {s(scb)}, 1"); a(f"s_add_u32 {s(st0)}, {s(st0)}, {s(st1)}"); a(f"s_add_u32 {s(st0)}, {s(st0)}, {s(sjp)}")
    a(f"s_lshl_b32 {s(st0)}, {s(st0)}, 10"); a(f"s_add_u32 {s(st0)}, {s(st0)}, {WS_HF}")
    a(f"buffer_load_dwordx4 {v(hr,4)}, {v(vlin)}, {s(sws,4)}, {s(st0)} offen")
    vb = V.alloc(1, 1, "baddr")
    a(f"s_mul_i32 {s(st0)}, {s(stp)}, {2*28672}"); a(f"s_mul_i32 {s(st1)}, {s(skh)}, {14*1024}"); a(f"s_add_u32 {s(st0)}, {s(st0)}, {s(st1)}")
    a(f"v_lshlrev_b32 {v(vb)}, 3, {v(vl)}"); a(f"v_add_u32 {v(vb)}, {s(st0)}, {v(vb)}")
    acc = V.alloc(16, 4, "acc")
    NB = 2
    B = [V.alloc(8, 4) for _ in range(NB)]
    k.stamp()
    a("s_waitcnt vmcnt(0)")
    k.stamp()
    a("s_barrier")
    def issue(i):
        for ttp in range(2):
            a(f"ds_read_b64 {v(B[i%NB]+4*ttp,2)}, {v(vb)} offset:{ttp*28672 + i*1024}")
            a(f"ds_read_b64 {v(B[i%NB]+4*ttp+2,2)}, {v(vb)} offset:{ttp*28672 + i*1024 + 512}")
    issue(0)
    for i in range(14):
        if i + 1 < 14:
            issue(i + 1); a("s_waitcnt lgkmcnt(4)")
        else: a("s_waitcnt lgkmcnt(0)")
        for e in range(2):
            for ttp in range(2):
                x = acc + (e*2+ttp)*4
                a(f"v_mfma_f32_16x16x32_bf16 {v(x,4)}, {v(W[e]+4*i,4)}, {v(B[i%NB]+4*ttp,4)}, {v(x,4) if i else '0'}")
    a.nop(8)
    k.stamp()
    a(f"s_lshl_b32 {s(st0)}, {s(sw)}, 11"); a(f"s_add_u32 {s(st0)}, {s(st0)}, {LEX}")
    a(f"v_add_u32 {v(t0)}, {s(st0)}, {v(vlin)}")
    kp = V.alloc(8, 4, "keep")
    a(f"s_cmp_eq_u32 {s(skh)}, 0")
    a("s_cbranch_scc0 p6_kh1")
    for kh, lab in ((0, None), (1, "p6_kh1")):
        if lab: a.label(lab)
        for e in range(2):
            a(f"ds_write_b128 {v(t0)}, {v(acc+(e*2+1-kh)*4,4)} offset:{e*1024}")
            for r in range(4): a(f"v_mov_b32 {v(kp+4*e+r)}, {v(acc+(e*2+kh)*4+r)}")
        if not lab: a("s_branch p6_x")
    a.label("p6_x")
    a(f"s_xor_b32 {s(st0)}, {s(sw)}, 4"); a(f"s_lshl_b32 {s(st0)}, {s(st0)}, 11"); a(f"s_add_u32 {s(st0)}, {s(st0)}, {LEX}")
    a(f"v_add_u32 {v(t0)}, {s(st0)}, {v(vlin)}")
    a("s_waitcnt lgkmcnt(0)")
    a("s_barrier")
    a(f"ds_read_b128 {v(acc,4)}, {v(t0)}")
    a(f"ds_read_b128 {v(acc+4,4)}, {v(t0)} offset:1024")
    xf = B[0]
    for i in range(4):
        unpack_lo(a, xf + 2*i, hr + i); unpack_hi(a, xf + 2*i + 1, hr + i)
    a("s_waitcnt lgkmcnt(0)")
    for i in range(8):
        a(f"v_add_f32 {v(kp+i)}, {v(kp+i)}, {v(acc+i)}")
        a(f"v_add_f32 {v(kp+i)}, {v(kp+i)}, {v(xf+i)}")
    op = V.alloc(4, 4, "op")
    for i in range(4): a(f"v_cvt_pk_bf16_f32 {v(op+i)}, {v(kp+2*i)}, {v(kp+2*i+1)}")
    a(f"v_and_b32 {v(t0)}, 15, {v(vl)}"); a(f"v_lshlrev_b32 {v(t0)}, 10, {v(t0)}")
    a(f"v_lshrrev_b32 {v(t1)}, 4, {v(vl)}"); a(f"v_lshl_add_u32 {v(t0)}, {v(t1)}, 4, {v(t0)}")
    a(f"s_lshl_b32 {s(st0)}, {s(srb)}, 16"); a(f"s_lshl_b32 {s(st1)}, {s(stt)}, 14"); a(f"s_add_u32 {s(st0)}, {s(st0)}, {s(st1)}")
    a(f"s_lshl_b32 {s(st1)}, {s(scb)}, 7"); a(f"s_add_u32 {s(st0)}, {s(st0)}, {s(st1)}")
    a(f"s_lshl_b32 {s(st1)}, {s(sjp)}, 6"); a(f"s_add_u32 {s(st0)}, {s(st0)}, {s(st1)}")
    a(f"buffer_store_dwordx4 {v(op,4)}, {v(t0)}, {s(sout,4)}, {s(st0)} offen")
    if STAMPS: a("s_waitcnt vmcnt(0)")
    k.stamp(); k.stamp_rt()
    k.dump_stamps(P["ws"], 5)
    k.finish()
    return k

S_ = 2048
HEADER = """; Kernarg layout (104 bytes, ptrs only): x wq wk wv wo bx win wsp bsp wout | out dbg ws
"""
def build(kernels, path):
    txt = HEADER
    for k in kernels:
        txt += f"; @launch kernel={k.name} grid=({k.nwg},1,1) block=({k.threads},1,1) lds={k.lds}\n"
    txt += '.amdgcn_target "amdgcn-amd-amdhsa--gfx950"\n.text\n'
    probs = []
    for k in kernels:
        t = k.text()
        probs += check(t, k.name)
        txt += t
    txt += '.section .rodata,"a"\n'
    for k in kernels:
        txt += ".p2align 6\n" + k.desc()
    open(path, "w").write(txt)
    for p in probs: print("CHECK:", p)
    for k in kernels:
        print(f"{k.name}: vgpr={k.V.maxused+1} sgpr={k.S.maxused+1} lines={len(k.a.lines)}")
    return probs

if __name__ == "__main__":
    ks = [gen_K1(), gen_K2(), gen_K3(), gen_K4(), gen_K5(), gen_K6()]
    build(ks, sys.argv[1] if len(sys.argv) > 1 else "out.s")
```
